```python
import torch

def _softmax(x, axis=-1):
    return torch.softmax(x, dim=axis)
def _gelu(x):
    return torch.nn.functional.gelu(x, approximate="tanh")
def _silu(x):
    return torch.nn.functional.silu(x)
def _sigmoid(x):
    return torch.sigmoid(x)
def _layernorm(x, axis=-1, eps=1e-5):
    m = x.mean(dim=axis, keepdim=True)
    v = x.var(dim=axis, keepdim=True, unbiased=False)
    return (x - m) / torch.sqrt(v + eps)
def _scatter_add(tgt, idx, src, axis=0):
    return tgt.clone().index_add_(axis, idx, src)
def _segment_sum(src, seg, n):
    out = torch.zeros((n,) + src.shape[1:], dtype=src.dtype)
    return out.index_add_(0, seg, src)
def _pad(x, pw):
    flat = tuple(v for pair in reversed(pw) for v in pair)
    return torch.nn.functional.pad(x, flat)

kernel_name = 'standalone__modern_conv_block_slak__vision'

def setup_inputs():

    _w = (lambda a: (lambda t: t.to(torch.bfloat16) if t.is_floating_point() else t)(torch.as_tensor(a)))
    H = W = 224
    C = 96
    K = 3
    return {
        "x": _w((lambda *s: torch.randn(*s, dtype=torch.bfloat16) * 0.05)(1, H, W, C)),
        "dw": _w((lambda *s: torch.randn(*s, dtype=torch.bfloat16) * 0.05)(K, K, C)),
        "w1": _w((lambda *s: torch.randn(*s, dtype=torch.bfloat16) * 0.05)(C, 4 * C)),
        "w2": _w((lambda *s: torch.randn(*s, dtype=torch.bfloat16) * 0.05)(4 * C, C)),
        "grn_g": _w((lambda *s: torch.randn(*s, dtype=torch.bfloat16) * 0.05)(4 * C)),
        "grn_b": _w((lambda *s: torch.randn(*s, dtype=torch.bfloat16) * 0.05)(4 * C)),
    }

def reference(x, dw, w1, w2, grn_g, grn_b):
    B, H, W, C = x.shape
    K = dw.shape[0]
    pad = K // 2
    xp = _pad(x, ((0,0),(pad,pad),(pad,pad),(0,0)))
    out = torch.zeros_like(x)
    for i in range(K):
        for j in range(K):
            out = out + xp[:, i:i+H, j:j+W, :] * dw[i, j][None, None, None, :]
    h = _layernorm(out, axis=-1)
    h = _gelu(h @ w1)
    gx = torch.sqrt((h * h).sum(axis=(1, 2), keepdims=True) + 1e-6)
    nx = gx / (gx.mean(axis=-1, keepdims=True) + 1e-6)
    h = grn_g[None, None, None, :] * (h * nx) + grn_b[None, None, None, :] + h
    return x + h @ w2
```

```python
import re

REG_RE = re.compile(r"\b([vas])(?:(\d+)\b|\[(\d+):(\d+)\])")
TRANS = ("v_exp_f32", "v_rcp_f32", "v_rsq_f32", "v_sqrt_f32", "v_log_f32")


def regs_of(op):
    out = []
    for m in REG_RE.finditer(op):
        k = m.group(1)
        if m.group(2) is not None:
            out.append((k, int(m.group(2))))
        else:
            out += [(k, i) for i in range(int(m.group(3)), int(m.group(4)) + 1)]
    if re.search(r"\bvcc\b", op):
        out += [("s", 106), ("s", 107)]
    if re.search(r"\bm0\b", op):
        out.append(("s", 124))
    if re.search(r"\bexec\b", op):
        out += [("s", 126), ("s", 127)]
    return out


class Ins:
    def __init__(self, text, tag=None):
        self.text = text
        self.tag = tag
        t = text.split(";")[0].strip()
        self.label = t.endswith(":")
        self.kind = "other"
        self.rd, self.wr = set(), set()
        self.srcc, self.srcab, self.data = set(), set(), set()
        self.passes = 0
        self.dpp = self.trans = self.perm = self.lanerd = self.wide = self.ldsdma = False
        if self.label or t.startswith(".") or not t:
            self.kind = "meta"
            return
        parts = t.split(None, 1)
        mn = self.mn = parts[0]
        ops = []
        if len(parts) > 1:
            depth, cur = 0, ""
            for ch in parts[1]:
                if ch == "[":
                    depth += 1
                if ch == "]":
                    depth -= 1
                if ch == "," and depth == 0:
                    ops.append(cur.strip())
                    cur = ""
                else:
                    cur += ch
            ops.append(cur.strip())
        R = [set(regs_of(o)) for o in ops]
        allr = lambda xs: set().union(*xs) if xs else set()
        if mn.startswith("v_mfma"):
            self.kind = "mfma"
            self.passes = 8 if "32x32x16" in mn else 4
            self.wr = R[0]
            self.srcab = R[1] | R[2]
            self.srcc = R[3]
            self.rd = self.srcab | self.srcc
        elif mn.startswith("v_"):
            self.kind = "valu"
            self.trans = mn.replace("_e32", "").replace("_e64", "") in TRANS
            self.dpp = "_dpp" in mn
            self.perm = mn.startswith("v_permlane")
            self.lanerd = mn.startswith("v_readfirstlane") or mn.startswith("v_readlane")
            self.wr = set(R[0])
            self.rd = allr(R[1:])
            if self.perm:
                self.wr = R[0] | R[1]
                self.rd = R[0] | R[1]
            if mn.startswith("v_fmac") or self.dpp:
                self.rd |= R[0]
            if mn.startswith("v_cndmask") and len(ops) == 3:
                self.rd |= {("s", 106), ("s", 107)}
        elif mn.startswith("ds_"):
            self.kind = "ds"
            if mn.startswith("ds_write") or mn.startswith("ds_add"):
                self.rd = allr(R)
            else:
                self.wr = R[0]
                self.rd = allr(R[1:])
        elif mn.startswith("buffer_") or mn.startswith("global_"):
            self.kind = "vmem"
            self.ldsdma = bool(re.search(r"\blds\b", t))
            if self.ldsdma:
                self.rd = allr(R) | {("s", 124)}
            elif "_load" in mn:
                self.wr = R[0]
                self.rd = allr(R[1:])
            else:
                self.rd = allr(R)
                self.data = R[0] if mn.startswith("buffer_") else R[1]
                self.wide = "x4" in mn or "x3" in mn
                if "atomic" in mn and re.search(r"\bsc0\b", t):
                    self.wr = R[0]
        elif mn.startswith("s_load") or mn in ("s_memtime", "s_memrealtime"):
            self.kind = "smem"
            self.wr = R[0]
            self.rd = allr(R[1:])
        elif mn.startswith("s_"):
            self.kind = "salu"
            if mn.startswith("s_cmp") or mn.startswith("s_cbranch") or mn in (
                    "s_waitcnt", "s_barrier", "s_nop", "s_branch", "s_endpgm", "s_sleep", "s_setprio"):
                self.rd = allr(R)
                if mn.startswith("s_cbranch_vcc"):
                    self.rd |= {("s", 106), ("s", 107)}
            else:
                self.wr = set(R[0])
                self.rd = allr(R[1:])
                if "saveexec" in mn:
                    self.wr |= {("s", 126), ("s", 127)}
        else:
            raise ValueError("unknown instruction: " + text)

    def states(self):
        if self.kind == "meta":
            return 0
        if self.mn == "s_nop":
            return int(self.text.split(";")[0].split()[1], 0) + 1
        return 1


class Prog:
    def __init__(self):
        self.items = []

    def __call__(self, text, tag=None):
        for line in text.strip("\n").split("\n"):
            line = line.strip()
            if line:
                self.items.append(Ins(line, tag))

    def extend(self, lines):
        for x in lines:
            if isinstance(x, tuple):
                self.items.append(x)
            else:
                self(x)

    def wait_vm(self, tag):
        self.items.append(("wait_vm", tag))

    def wait_vm_all(self):
        self.items.append(("wait_vm", None))

    def wait_lgkm(self):
        self.items.append(("wait_lgkm", None))

    def region_begin(self):
        self.items.append(("region_begin", None))

    def region_end(self):
        self.items.append(("region_end", None))

    def _waits(self):
        out, vm, lg, stack = [], [], [], []

        def emit(nv, nl):
            s = "s_waitcnt"
            if nv is not None:
                s += f" vmcnt({min(nv, 63)})"
                del vm[: max(0, len(vm) - min(nv, 63))]
            if nl is not None:
                s += f" lgkmcnt({min(nl, 15)})"
                del lg[: max(0, len(lg) - min(nl, 15))]
            out.append(Ins(s))

        for it in self.items:
            if isinstance(it, tuple):
                op, arg = it
                if op == "wait_vm":
                    idx = [i for i, x in enumerate(vm) if arg is None or x.tag == arg]
                    if idx:
                        emit(len(vm) - 1 - idx[-1], None)
                elif op == "wait_lgkm":
                    if lg:
                        emit(None, 0)
                elif op == "region_begin":
                    stack.append((list(vm), list(lg)))
                elif op == "region_end":
                    v0, l0 = stack.pop()
                    nv = 0 if any(x not in v0 for x in vm) else None
                    nl = 0 if any(x not in l0 for x in lg) else None
                    if nv is not None or nl is not None:
                        emit(nv, nl)
                    vm[:], lg[:] = v0, l0
                continue
            if it.kind == "meta":
                out.append(it)
                continue
            touched = it.rd | it.wr
            nv = nl = None
            for i, x in enumerate(vm):
                if x.wr & touched:
                    nv = len(vm) - 1 - i
            for i, x in enumerate(lg):
                if x.wr & touched:
                    nl = 0 if any(y.kind == "smem" for y in lg) else len(lg) - 1 - i
            if nv is not None or nl is not None:
                emit(nv, nl)
            if it.kind == "salu" and it.mn == "s_waitcnt":
                m = re.search(r"vmcnt\((\d+)\)", it.text)
                if m:
                    del vm[: max(0, len(vm) - int(m.group(1)))]
                m = re.search(r"lgkmcnt\((\d+)\)", it.text)
                if m:
                    del lg[: max(0, len(lg) - int(m.group(1)))]
            out.append(it)
            if it.kind == "vmem":
                vm.append(it)
            elif it.kind in ("ds", "smem"):
                lg.append(it)
        return out

    @staticmethod
    def _need(p, c):
        n = 0
        pv = {r for r in p.wr if r[0] in "va"}
        ps = {r for r in p.wr if r[0] == "s"}
        if p.kind == "valu":
            if c.kind == "mfma" and pv & c.rd:
                n = max(n, 2)
            if c.kind == "valu":
                if p.trans and not c.trans and pv & c.rd:
                    n = max(n, 1)
                if (c.dpp or c.perm) and pv & c.rd:
                    n = max(n, 2)
                if c.lanerd and pv & c.rd:
                    n = max(n, 1)
                if ps & c.rd:
                    n = max(n, 2)
            if c.kind == "vmem" and ps & c.rd:
                n = max(n, 5)
            if c.kind == "salu" and ps & c.rd:
                n = max(n, 1)
        if p.kind == "mfma":
            big = {4: 8, 8: 12}[p.passes]
            if c.kind == "mfma":
                if p.wr & c.srcab:
                    n = max(n, big)
                if p.wr & c.srcc and not (p.wr == c.srcc and p.passes == c.passes):
                    n = max(n, big - 2)
                if p.wr & c.wr and not (p.wr == c.srcc and p.passes == c.passes):
                    n = max(n, big - 2)
            elif c.kind in ("valu", "ds", "vmem") and p.wr & (c.rd | c.wr):
                n = max(n, big)
            if c.kind == "valu" and p.srcc & c.wr:
                n = max(n, {4: 3, 8: 7}[p.passes])
        if p.kind == "salu" and ("s", 124) in p.wr and c.ldsdma:
            n = max(n, 1)
        if p.kind == "vmem" and p.wide and p.data & c.wr:
            n = max(n, 2)
        return n

    def _hazards(self, seq):
        out, pads = [], 0
        for c in seq:
            if c.kind != "meta":
                dist, need = 0, 0
                for p in reversed(out):
                    if dist >= 12:
                        break
                    if p.kind == "meta":
                        continue
                    need = max(need, self._need(p, c) - dist)
                    dist += p.states()
                if need > 0:
                    out.append(Ins(f"s_nop {need - 1}"))
                    pads += need
            out.append(c)
        return out, pads

    def render(self):
        seq, pads = self._hazards(self._waits())
        self.final, self.pads = seq, pads
        return "\n".join(x.text if x.label or x.text.startswith(".") else "    " + x.text for x in seq) + "\n"


def weave(main, fill, per=2, start=0):
    out, k = [], 0
    for i, x in enumerate(main):
        out.append(x)
        n = 0
        while i >= start and k < len(fill) and n < per:
            f = fill[k]
            if isinstance(f, tuple) and f[0] == "at":
                if i < f[1]:
                    break
                k += 1
                continue
            out.append(f)
            k += 1
            if not isinstance(f, tuple):
                n += 1
    out += [f for f in fill[k:] if not (isinstance(f, tuple) and f[0] == "at")]
    return out
```

```python
import math
import struct
import sys

from asmlib import Prog, weave

NAME = "standalone__modern_conv_block_slak__vision"
NWG = 256
NRED = 24
NREP = 8
OOB = 0x80000000

WS_, WSL = 0, 18432
XP, XPAIR, XROW, XPX = 73728, 6752, 3328, 208
LN0 = 127744
DWC = 152320
LH, BP, LO, RS = 152320, 155392, 156928, 163072
LDS_BYTES = 163840
H1, H1P = 0, 16384
H2 = NRED * H1P
WS_BYTES = H2 + NREP * 4096
DIAG = 1 << 20

C0 = 2 * math.log2(math.e) * math.sqrt(2 / math.pi)
KAP = (C0 * 0.044715) ** (-1 / 3)
KC = -C0 * KAP


def f32(x):
    return "0x%08x" % struct.unpack("<I", struct.pack("<f", x))[0]


def v(a, n=1):
    return f"v{a}" if n == 1 else f"v[{a}:{a + n - 1}]"


def a(x, n=1):
    return f"a{x}" if n == 1 else f"a[{x}:{x + n - 1}]"


X, DW, W1, W2, G, B, OUT, DBG, WS = ("s[4:7]", "s[12:15]", "s[16:19]", "s[20:23]", "s[24:27]",
                                     "s[28:31]", "s[32:35]", "s[36:39]", "s[40:43]")
sW, sY0, sX0 = "s44", "s45", "s46"
MF16, MF32 = "v_mfma_f32_16x16x32_bf16", "v_mfma_f32_32x32x16_bf16"


def generate(opt=None):
    opt = dict(stamps=False, dump=None, st="", prefetch=True) | (opt or {})
    P = Prog()
    nstamp = [0]

    def stamp():
        if opt["stamps"]:
            k = nstamp[0]
            P(f"s_memrealtime s[{72 + 2 * k}:{73 + 2 * k}]")
            nstamp[0] += 1

    def dump(name, regs, tmp):
        if opt["dump"] != name:
            return
        P(f"s_mul_i32 s3, s2, {len(regs) * 1024}")
        P(f"s_lshl_b32 s47, {sW}, 8")
        P(f"s_add_u32 s3, s3, s47")
        P(f"s_add_u32 s3, s3, {DIAG + 65536}")
        P(f"v_mbcnt_lo_u32_b32 {tmp}, -1, 0")
        P(f"v_mbcnt_hi_u32_b32 {tmp}, -1, {tmp}")
        P(f"v_lshlrev_b32 {tmp}, 2, {tmp}")
        for r in regs:
            P(f"buffer_store_dword {r}, {tmp}, {WS}, s3 offen")
            P("s_add_u32 s3, s3, 1024")
        P.wait_vm_all()

    P(f"s_cmp_ge_u32 s2, {NWG}")
    P("s_cbranch_scc1 L_END")
    stamp()
    for srd, off in ((4, 0), (12, 8), (16, 16), (40, 64), (36, 56), (20, 24), (24, 32), (28, 40), (32, 48)):
        P(f"s_load_dwordx2 s[{srd}:{srd + 1}], s[0:1], {off}")
    if opt["prefetch"]:
        P("s_getpc_b64 s[66:67]")
        P("L_PC:")
        P("v_lshlrev_b32 v1, 7, v0")
        P("v_min_u32 v1, L_CODE_END-L_PC-4, v1")
        P("global_load_dword v2, v1, s[66:67]")
    P(f"""
    v_lshrrev_b32 v3, 6, v0
    v_and_b32 v0, 63, v0
    v_readfirstlane_b32 {sW}, v3
    s_and_b32 s47, s2, 7
    s_lshr_b32 s48, s2, 3
    s_lshr_b32 s49, s47, 1
    s_lshl_b32 s49, s49, 2
    s_lshr_b32 s50, s48, 3
    s_add_u32 s49, s49, s50
    s_mul_i32 {sY0}, s49, 14
    s_and_b32 s47, s47, 1
    s_lshl_b32 s47, s47, 3
    s_and_b32 s48, s48, 7
    s_add_u32 s47, s47, s48
    s_mul_i32 {sX0}, s47, 14
    s_sub_u32 s47, {sX0}, 1
    s_mul_i32 s48, s47, 192
    s_movk_i32 s49, 224
    v_mov_b32 v8, {OOB}
    """)
    for i in range(4):
        P(f"""
        v_add_u32 v9, {64 * i}, v0
        v_mul_u32_u24 v10, 5042, v9
        v_lshrrev_b32 v10, 16, v10
        v_mad_i32_i24 v11, v10, -13, v9
        v_add_u32 v12, s47, v10
        v_sub_u32 v9, v9, v10
        v_cmp_gt_u32 vcc, 12, v11
        v_cmp_gt_u32 s[64:65], s49, v12
        v_lshl_add_u32 v9, v9, 4, s48
        s_and_b64 vcc, vcc, s[64:65]
        v_cndmask_b32 v{4 + i}, v8, v9, vcc
        """)
    diag = opt["stamps"] or opt["dump"]
    for srd, size in ((4, 9633792), (12, 1728), (16, 73728), (20, 73728), (24, 768), (28, 768),
                      (32, 9633792), (36, 256), (40, (64 << 20) if diag else WS_BYTES)):
        P(f"s_mov_b32 s{srd + 2}, {size}")
        P(f"s_mov_b32 s{srd + 3}, 0x20000")
    P(f"""
    v_lshlrev_b32 v9, 4, v0
    s_lshl_b32 s47, {sW}, 11
    s_add_u32 m0, s47, {DWC}
    """)
    P(f"buffer_load_dwordx4 v9, {DW}, 0 offen lds", "dw")
    P(f"buffer_load_dwordx4 v9, {DW}, 0 offen offset:1024 lds", "dw")

    def xrow(k):
        P(f"""
        s_add_u32 s47, {sW}, {4 * k}
        s_add_u32 s48, s47, {sY0}
        s_sub_u32 s48, s48, 1
        s_cmp_lt_u32 s48, 224
        s_cselect_b32 s6, 9633792, 0
        s_cselect_b32 s48, s48, 0
        s_mul_i32 s48, s48, 43008
        s_lshr_b32 s49, s47, 1
        s_mul_i32 s49, s49, {XPAIR}
        s_and_b32 s47, s47, 1
        s_mul_i32 s47, s47, {XROW}
        s_add_u32 s47, s47, s49
        s_add_u32 m0, s47, {XP}
        """)
        for i in range(4):
            if i == 3:
                P("s_mov_b64 exec, 0xffff")
            P(f"buffer_load_dwordx4 v{4 + i}, {X}, s48 offen lds", f"x{k}")
            if i < 3:
                P("s_add_u32 m0, m0, 1024")
        P("s_mov_b64 exec, -1")

    for k in range(3):
        xrow(k)
    xrow(3)
    P("s_mov_b32 s6, 9633792")
    P(f"s_mul_i32 s47, {sW}, 192")
    for i in range(3):
        P(f"""
        v_add_u32 v10, {64 * i}, v0
        v_mul_u32_u24 v11, 5462, v10
        v_lshrrev_b32 v11, 16, v11
        v_mul_u32_u24 v11, 576, v11
        v_lshl_add_u32 v10, v10, 4, s47
        v_add_u32 v{4 + i}, v10, v11
        """)
    P(f"s_mul_i32 s50, {sW}, {WSL}")
    P("s_mov_b32 m0, s50")
    for blk in range(6):
        P(f"s_mov_b32 s48, {blk * 12288}")
        for i in range(3):
            P(f"buffer_load_dwordx4 v{4 + i}, {W1}, s48 offen lds", "w1")
            if blk * 3 + i < 17:
                P("s_add_u32 m0, m0, 1024")
    P(f"""
    v_mov_b32 v20, -1
    v_mov_b32 v21, -1
    v_mov_b32 v22, -1
    v_mov_b32 v23, -1
    s_mul_i32 s47, {sW}, {6 * H1P}
    s_lshl_b32 s48, s2, 6
    s_add_u32 s47, s47, s48
    v_lshrrev_b32 v10, 2, v0
    v_and_b32 v11, 3, v0
    v_lshlrev_b32 v11, 4, v11
    v_lshl_add_u32 v12, v10, 14, v11
    v_add_u32 v12, s47, v12
    v_cmp_gt_u32 vcc, 24, v0
    s_add_u32 s48, s48, {H2}
    v_lshrrev_b32 v13, 3, v0
    v_cndmask_b32 v12, v8, v12, vcc
    v_and_b32 v10, 1, v10
    v_mul_u32_u24 v10, 1536, v10
    v_lshl_add_u32 v13, v13, 12, v11
    v_add3_u32 v13, v13, v10, s48
    s_cmp_lt_u32 s2, {NRED}
    s_cselect_b64 s[64:65], -1, 0
    s_cmp_eq_u32 {sW}, 0
    s_cselect_b64 vcc, s[64:65], 0
    v_cndmask_b32 v13, v8, v13, vcc
    """)
    P(f"buffer_store_dwordx4 v[20:23], v12, {WS}, 0 offen sc1", "clr")
    P(f"buffer_store_dwordx4 v[20:23], v13, {WS}, 0 offen sc1", "clr")
    stamp()

    vN, vG, vM0, vDW, vB1, vB2, vL1, vL2, vW1, vR0, vR1 = 1, 2, 4, 12, 13, 14, 15, 16, 17, 18, 19
    P(f"""
    v_and_b32 v{vN}, 15, v0
    v_lshrrev_b32 v{vG}, 4, v0
    v_lshrrev_b32 v9, 3, v{vN}
    v_sub_u32 v9, v{vG}, v9
    v_cmp_gt_u32 vcc, 3, v9
    v_and_b32 v10, 1, v0
    v_lshlrev_b32 v10, 4, v10
    v_mov_b32 v11, 0xffff
    v_lshlrev_b32 v10, v10, v11
    v_cndmask_b32 v10, 0, v10, vcc
    v_cndmask_b32 v9, 0, v9, vcc
    v_mul_u32_u24 v9, 576, v9
    s_lshl_b32 s47, {sW}, 11
    s_add_u32 s47, s47, {DWC}
    v_add_u32 v{vDW}, s47, v9
    v_bfe_u32 v11, v0, 1, 2
    """)
    for i in range(4):
        P(f"v_cmp_eq_u32 vcc, {i}, v11")
        P(f"v_cndmask_b32 v{vM0 + i}, 0, v10, vcc")
    P(f"""
    v_lshrrev_b32 v20, 1, v{vG}
    v_and_b32 v21, 1, v{vG}
    v_mul_u32_u24 v22, {XPAIR}, v20
    v_mul_u32_u24 v23, {XROW}, v21
    v_add_u32 v22, v22, v23
    v_add_u32 v22, {XP}, v22
    """)
    for dst, t0 in ((vB1, 0), (vB2, 4)):
        P(f"""
        s_add_u32 s47, {sW}, {t0}
        s_lshl_b32 s47, s47, 4
        v_add_u32 v9, s47, v{vN}
        v_min_u32 v9, 97, v9
        v_mul_u32_u24 v10, 4682, v9
        v_lshrrev_b32 v10, 16, v10
        v_mul_u32_u24 v9, {XPX}, v9
        v_mul_u32_u24 v10, {XPAIR - 14 * XPX}, v10
        v_add3_u32 v{dst}, v9, v10, v22
        """)
    P(f"""
    v_lshl_add_u32 v9, v20, 4, v{vN}
    v_lshl_add_u32 v10, v20, 2, v{vN}
    v_add_u32 v11, 8, v{vN}
    v_cmp_gt_u32 vcc, 2, v{vN}
    s_cmp_eq_u32 {sW}, 2
    s_cselect_b64 s[64:65], -1, 0
    v_cndmask_b32 v10, v11, v10, vcc
    v_cndmask_b32 v10, v9, v10, s[64:65]
    v_lshlrev_b32 v21, 9, v21
    s_mul_i32 s47, {sW}, 6144
    s_add_u32 s48, s47, {LN0}
    s_add_u32 s49, s47, {XP}
    v_lshl_add_u32 v9, v9, 4, v21
    v_lshl_add_u32 v10, v10, 4, v21
    v_add_u32 v{vL1}, s48, v9
    v_add_u32 v{vL2}, s49, v10
    v_lshrrev_b32 v9, 2, v{vN}
    v_lshl_add_u32 v9, v20, 2, v9
    v_mul_u32_u24 v9, 192, v9
    v_and_b32 v10, 3, v0
    v_lshlrev_b32 v10, 3, v10
    v_bfe_u32 v11, v0, 4, 1
    v_lshl_add_u32 v10, v11, 5, v10
    v_add3_u32 v{vW1}, v9, v10, s50
    v_lshlrev_b32 v9, 4, v0
    v_add_u32 v{vR0}, {LN0}, v9
    v_add_u32 v{vR1}, {XP}, v9
    s_mov_b32 s60, {f32(KC)}
    s_mov_b32 s61, {f32(KC)}
    """)
    CA, CD = 112, 64
    P.wait_vm("dw")
    rd = [f"ds_read_b128 {v(CA + 4 * f, 4)}, v{vDW} offset:{16 * f}" for f in range(36)]
    for f in range(8):
        P(rd[f])
    for f in range(36):
        if f + 8 < 36:
            P(rd[f + 8])
        for i in range(4):
            P(f"v_and_b32 v{CA + 4 * f + i}, v{vM0 + i}, v{CA + 4 * f + i}")
    P.wait_vm("x2")
    P("s_barrier")
    stamp()

    def conv_ln(vB, vL):
        rds = [f"ds_read_b128 {a(4 * (cg * 3 + dx), 4)}, v{vB} offset:{dx * XPX + cg * 16}"
               for cg in range(12) for dx in range(3)]
        for k in range(8):
            P(rds[k])
        for k in range(36):
            cg, dx = divmod(k, 3)
            if k + 8 < 36:
                P(rds[k + 8])
            d = v(CD + 4 * cg, 4)
            P(f"{MF16} {d}, {v(CA + 4 * (dx * 12 + cg), 4)}, {a(4 * k, 4)}, {d if dx else 0}")
        pr = lambda i: v(CD + 2 * i, 2)
        P(f"v_pk_add_f32 v[20:21], {pr(0)}, {pr(1)}")
        P(f"v_pk_mul_f32 v[22:23], {pr(0)}, {pr(0)}")
        P(f"v_pk_add_f32 v[24:25], {pr(2)}, {pr(3)}")
        P(f"v_pk_mul_f32 v[26:27], {pr(1)}, {pr(1)}")
        for i in range(2, 24):
            if i >= 4:
                s = "v[20:21]" if i % 2 == 0 else "v[24:25]"
                P(f"v_pk_add_f32 {s}, {s}, {pr(i)}")
            q = "v[22:23]" if i % 2 == 0 else "v[26:27]"
            P(f"v_pk_fma_f32 {q}, {pr(i)}, {pr(i)}, {q}")
        P(f"""
        v_pk_add_f32 v[20:21], v[20:21], v[24:25]
        v_pk_add_f32 v[22:23], v[22:23], v[26:27]
        v_add_f32 v20, v20, v21
        v_add_f32 v22, v22, v23
        v_permlane16_swap_b32 v20, v22
        v_add_f32 v20, v20, v22
        v_mov_b32 v22, v20
        v_permlane16_swap_b32 v20, v22
        v_mul_f32 v20, {f32(1 / 96)}, v20
        v_mul_f32 v22, {f32(1 / 96)}, v22
        v_fma_f32 v22, -v20, v20, v22
        v_max_f32 v22, 0, v22
        v_add_f32 v22, {f32(1e-5)}, v22
        v_rsq_f32 v22, v22
        v_mul_f32 v22, {f32(1 / KAP)}, v22
        v_mul_f32 v23, -v20, v22
        """)
        for s in range(6):
            for i in range(4):
                r = pr(4 * s + i)
                P(f"v_pk_fma_f32 {r}, {r}, v[22:23], v[22:23] op_sel:[0,0,1] op_sel_hi:[1,0,1]")
            for i in range(4):
                P(f"v_cvt_pk_bf16_f32 v{CD + 8 * s + i}, v{CD + 8 * s + 2 * i}, v{CD + 8 * s + 2 * i + 1}")
            P(f"ds_write_b128 v{vL}, {v(CD + 8 * s, 4)} offset:{1024 * s}")

    conv_ln(vB1, vL1)
    P.wait_vm("x3")
    P.wait_lgkm()
    P("s_barrier")
    stamp()
    P(f"s_cmp_eq_u32 {sW}, 3")
    P("s_cbranch_scc1 L_NOCONV2")
    P.region_begin()
    conv_ln(vB2, vL2)
    P.region_end()
    P("L_NOCONV2:")
    AW1, ALN, ALL = 144, 0, 216
    P.wait_vm("clr")
    for mt in range(3):
        for s in range(6):
            for e in range(2):
                P(f"ds_read_b64_tr_b16 {a(AW1 + (mt * 6 + s) * 4 + 2 * e, 2)}, v{vW1} "
                  f"offset:{s * 3072 + e * 1536 + mt * 64}")
    P.wait_lgkm()
    P("s_barrier")
    stamp()
    P(f"""
    v_cmp_eq_u32 vcc, 0, v0
    s_cmp_eq_u32 {sW}, 0
    s_cselect_b64 s[64:65], -1, 0
    s_and_b64 vcc, vcc, s[64:65]
    v_mov_b32 v9, 1
    v_cndmask_b32 v10, v8, 0, vcc
    """)
    P(f"buffer_atomic_add v9, v10, {DBG}, 0 offen")

    SS, ACC, TMP, HR = 48, (64, 80), 96, 112
    RED, TL, vPUB, vBP, vLH = 20, 26, 44, 45, 46
    DL = HR + 96

    def ln_read(t, s):
        base, off = (vR0, t * 6144) if t < 4 else (vR1, (t - 4) * 6144)
        dst = ALN + (t * 6 + s) * 4 if t < 6 else ALL + 4 * s
        return f"ds_read_b128 {a(dst, 4)}, v{base} offset:{off + 1024 * s}"

    def mm1(bi):
        mt, t = divmod(bi, 6)
        d = v(ACC[bi % 2], 16)
        return [f"{MF32} {d}, {a(AW1 + (mt * 6 + s) * 4, 4)}, {a(ALN + (t * 6 + s) * 4, 4)}, {d if s else 0}"
                for s in range(6)]

    left = [f"{MF32} {v(DL + 16 * m, 16)}, {a(ALL + 4 * s, 4)}, {a(AW1 + (m * 6 + s) * 4, 4)}, "
            f"{v(DL + 16 * m, 16) if s else 0}" for m in range(3) for s in range(6)]

    for s in range(6):
        P(ln_read(0, s))
    fill = [ln_read(t, s) for t in (1, 6, 2, 3, 4, 5) for s in range(6)]
    P.extend(weave(mm1(0), fill, per=6))
    P(f"""
    v_bfe_u32 v9, v0, 4, 1
    v_lshrrev_b32 v10, 5, v0
    v_bfe_u32 v11, v0, 2, 1
    v_bfe_u32 v12, v0, 3, 1
    v_lshlrev_b32 v13, 3, v9
    v_lshl_add_u32 v13, v10, 2, v13
    v_lshl_add_u32 v13, v11, 1, v13
    v_add_u32 v13, v13, v12
    v_lshlrev_b32 v{vBP}, 2, v13
    s_mul_i32 s47, {sW}, {6 * H1P}
    s_lshl_b32 s48, s2, 6
    s_add_u32 s47, s47, s48
    v_and_b32 v14, 3, v0
    v_cmp_eq_u32 vcc, 0, v14
    v_add_u32 v13, s47, v{vBP}
    v_lshl_add_u32 v15, v9, 1, v11
    v_cndmask_b32 v{vPUB}, v8, v13, vcc
    v_lshl_add_u32 v14, v12, 2, v14
    v_lshlrev_b32 v14, 1, v14
    v_lshl_add_u32 v14, v15, 4, v14
    v_lshl_add_u32 v14, v10, 7, v14
    s_mul_i32 s47, {sW}, 768
    s_add_u32 s47, s47, {LH}
    v_add_u32 v{vLH}, s47, v14
    v_lshlrev_b32 v9, 4, v0
    v_add_u32 v9, s50, v9
    """)
    for k in range(18):
        if k % 4 == 0:
            P(f"s_add_u32 m0, s50, {k * 1024}")
            P(f"s_mov_b32 s48, {k * 1024}")
        P(f"buffer_load_dwordx4 v9, {W2}, s48 offen offset:{(k % 4) * 1024} lds", "w2")

    def reduce_ss(mt):
        o = []
        for r in range(0, 16, 2):
            o.append(f"v_add_f32_dpp v{SS + r}, v{SS + r}, v{SS + r} row_ror:8 row_mask:0xf bank_mask:0x3")
        for r in range(0, 16, 2):
            o.append(f"v_add_f32_dpp v{SS + r}, v{SS + r + 1}, v{SS + r + 1} row_ror:8 row_mask:0xf bank_mask:0xc")
        for r in range(0, 16, 4):
            o.append(f"v_add_f32_dpp v{SS + r}, v{SS + r}, v{SS + r} row_half_mirror row_mask:0xf bank_mask:0x5")
        for r in range(0, 16, 4):
            o.append(f"v_add_f32_dpp v{SS + r}, v{SS + r + 2}, v{SS + r + 2} row_half_mirror row_mask:0xf bank_mask:0xa")
        for h in range(2):
            o.append(f"v_permlane16_swap_b32 v{SS + 8 * h}, v{SS + 8 * h + 4}")
        for h in range(2):
            o.append(f"v_add_f32 v{RED + 2 * mt + h}, v{SS + 8 * h}, v{SS + 8 * h + 4}")
        for qp in ("[2,3,0,1]", "[1,0,3,2]"):
            for h in range(2):
                r = RED + 2 * mt + h
                o.append(f"v_add_f32_dpp v{r}, v{r}, v{r} quad_perm:{qp} row_mask:0xf bank_mask:0xf")
        return o

    def publish(mt):
        o = []
        for h in range(2):
            r = RED + 2 * mt + h
            o.append(f"v_add_f32 v{r}, v{r}, v{38 + 2 * mt + h}")
        for h in range(2):
            r = RED + 2 * mt + h
            o.append(f"v_and_b32 v{r}, 0x7fffffff, v{r}")
        for h in range(2):
            o.append(f"s_mov_b32 s47, {(2 * mt + h) * H1P}")
            o.append(f"buffer_store_dword v{RED + 2 * mt + h}, v{vPUB}, {WS}, s47 offen sc1")
        return o

    for bi in range(18):
        mt, t = divmod(bi, 6)
        src = ACC[bi % 2]
        prs = [(src + 2 * i, TMP + 2 * i) for i in range(8)]
        if bi == 10:
            prs += [(DL + 16 * m, TL + 2 * m) for m in range(3)]
        p2 = lambda r: v(r, 2)
        M = mm1(bi + 1) if bi < 17 else []
        m1, m2 = M[:3], M[3:]
        if bi < 9:
            m1 = m1[:1] + [left[2 * bi]] + m1[1:]
            m2 = m2[:1] + [left[2 * bi + 1]] + m2[1:]
        for s_, t_ in prs:
            P(f"v_pk_fma_f32 {p2(t_)}, {p2(s_)}, {p2(s_)}, s[60:61] neg_lo:[1,0,0] neg_hi:[1,0,0]")
        for s_, t_ in prs:
            P(f"v_pk_mul_f32 {p2(t_)}, {p2(s_)}, {p2(t_)}")

        def tphase(op, ms):
            tr = [f"{op} v{t_ + h}, v{t_ + h}" for _, t_ in prs for h in range(2)]
            for k, x in enumerate(tr):
                if k % 3 == 0 and k // 3 < len(ms):
                    P(ms[k // 3])
                P(x)

        tphase("v_exp_f32", m1)
        for s_, t_ in prs:
            P(f"v_pk_add_f32 {p2(t_)}, {p2(t_)}, 1.0 op_sel_hi:[1,0]")
        tphase("v_rcp_f32", m2)
        for s_, t_ in prs:
            P(f"v_pk_mul_f32 {p2(t_)}, {p2(s_)}, {p2(t_)}")
        for i in range(8):
            y, s_ = p2(TMP + 2 * i), p2(SS + 2 * i)
            P(f"v_pk_fma_f32 {s_}, {y}, {y}, {s_}" if t else f"v_pk_mul_f32 {s_}, {y}, {y}")
        cvt = [f"v_cvt_pk_bf16_f32 v{HR + 8 * bi + i}, v{TMP + 2 * i}, v{TMP + 2 * i + 1}" for i in range(8)]
        if bi < 17:
            P.extend(cvt)
        if bi == 10:
            for m in range(3):
                P(f"v_cvt_pk_bf16_f32 v{32 + m}, v{TL + 2 * m}, v{TL + 2 * m + 1}")
            for m in range(3):
                P(f"v_pk_mul_f32 {p2(TL + 2 * m)}, {p2(TL + 2 * m)}, {p2(TL + 2 * m)}")
            for m in range(3):
                P(f"ds_write_b16 v{vLH}, v{32 + m} offset:{256 * m}")
                P(f"ds_write_b16_d16_hi v{vLH}, v{32 + m} offset:{256 * m + 64}")
            for m in range(3):
                P(f"v_add_f32 v{TL + 2 * m}, v{TL + 2 * m}, v{TL + 2 * m + 1}")
            for m in range(3):
                P(f"v_mov_b32 v{TL + 2 * m + 1}, v{TL + 2 * m}")
            for m in range(3):
                P(f"v_permlane32_swap_b32 v{TL + 2 * m}, v{TL + 2 * m + 1}")
            for m in range(3):
                P(f"v_add_f32 v{TL + 2 * m}, v{TL + 2 * m}, v{TL + 2 * m + 1}")
            for m in range(3):
                for h in range(2):
                    P(f"ds_bpermute_b32 v{38 + 2 * m + h}, v{vBP}, v{TL + 2 * m} offset:{64 * h}")
        if t == 5:
            P.extend(reduce_ss(mt))
            if mt == 1:
                P.extend(publish(0))
            if mt >= 1:
                P.extend(publish(mt))
        if bi == 17:
            stamp()
            P.extend(cvt)
    dump("h", [f"v{HR + i}" for i in range(144)], "v47")

    vO, vSEL, vCNT = 1, 4, 10
    AH, AX, AXL, AB, AHL, AOL = 0, 144, 180, 192, 204, 216
    WP, WF, AC2, SV = 40, 112, 40, 16
    P(f"""
    v_and_b32 v11, 15, v0
    v_lshrrev_b32 v12, 4, v0
    s_mul_i32 s51, {sY0}, 224
    s_add_u32 s51, s51, {sX0}
    s_mul_i32 s51, s51, 192
    s_mov_b32 s52, 83328
    v_lshrrev_b32 v13, 1, v12
    v_and_b32 v14, 1, v12
    v_lshlrev_b32 v14, 2, v14
    v_lshl_add_u32 v13, v13, 4, v14
    v_lshrrev_b32 v14, 2, v11
    v_add_u32 v14, v14, v13
    v_mul_u32_u24 v14, 192, v14
    v_and_b32 v15, 3, v0
    v_lshl_add_u32 v14, v15, 4, v14
    v_add_u32 v14, s50, v14
    """)
    P(f"s_mul_i32 s47, {sW}, 192")
    P("v_lshl_add_u32 v16, v13, 1, s47")
    for j in range(3):
        for h in range(2):
            P(f"buffer_load_dwordx2 {a(AB + 4 * j + 2 * h, 2)}, v16, {B}, 0 offen offset:{64 * j + 16 * h}")
    P.wait_vm("w2")
    fidx = lambda p, j, e: p * 6 + j * 2 + e
    for p in range(3):
        for j in range(3):
            for e in range(2):
                for h in range(2):
                    P(f"ds_read_b64_tr_b16 {v(WP + 4 * fidx(p, j, e) + 2 * h, 2)}, v14 "
                      f"offset:{j * 6144 + h * 1536 + p * 64 + e * 8}")
    for i in range(3):
        P(f"""
        s_mul_i32 s47, {sW}, 3
        s_add_u32 s47, s47, {i}
        s_and_b32 s48, s47, 1
        s_mul_i32 s48, s48, 43008
        s_add_u32 s48, s48, s51
        s_lshr_b32 s47, s47, 1
        s_lshl_b32 s47, s47, 4
        v_add_u32 v15, s47, v11
        v_mul_u32_u24 v16, 4682, v15
        v_lshrrev_b32 v16, 16, v16
        v_mul_u32_u24 v15, 192, v15
        v_mad_u32_u24 v15, v16, s52, v15
        v_lshl_add_u32 v16, v12, 4, s48
        v_add_u32 v{vO + i}, v15, v16
        """)
        for p in range(3):
            P(f"buffer_load_dwordx4 {a(AX + (i * 3 + p) * 4, 4)}, v{vO + i}, {X}, 0 offen offset:{64 * p}")
    P(f"""
    s_add_u32 s53, s51, {(12 * 224 + 12) * 192}
    v_bfe_u32 v15, v0, 1, 1
    v_mul_u32_u24 v15, 43008, v15
    v_and_b32 v16, 1, v0
    v_mul_u32_u24 v16, 192, v16
    v_add3_u32 v15, v15, v16, s53
    v_lshl_add_u32 v15, v12, 4, v15
    v_cmp_gt_u32 vcc, 4, v11
    s_cmp_eq_u32 {sW}, 0
    s_cselect_b64 s[64:65], -1, 0
    s_and_b64 vcc, vcc, s[64:65]
    v_mov_b32 v17, 0
    v_cndmask_b32 v15, v8, v15, vcc
    """)
    for p in range(3):
        P(f"buffer_load_dwordx4 {a(AXL + 4 * p, 4)}, v15, {X}, 0 offen offset:{64 * p}")
    P(f"buffer_load_dword v{vCNT}, v17, {DBG}, 0 offen sc1")
    P(f"""
    v_bfe_u32 v15, v0, 4, 1
    v_lshrrev_b32 v16, 5, v0
    v_lshl_add_u32 v16, v16, 4, v11
    v_lshlrev_b32 v16, 4, v16
    v_lshl_add_u32 v15, v15, 10, v16
    s_mul_i32 s47, {sW}, 12288
    v_add_u32 v15, s47, v15
    v_add_u32 v16, 49152, v15
    v_add_u32 v17, 98304, v15
    s_mul_i32 s47, {sW}, 384
    s_add_u32 s47, s47, {BP}
    v_lshl_add_u32 v18, v12, 4, s47
    """)
    P.wait_lgkm()
    P("s_barrier")
    stamp()
    bias = [f"{MF16} {a(AOL + 4 * (2 * p + e), 4)}, {v(WP + 4 * fidx(p, j, e), 4)}, {a(AB + 4 * j, 4)}, "
            f"{a(AOL + 4 * (2 * p + e), 4) if j else 0}" for j in range(3) for p in range(3) for e in range(2)]
    for bi in range(18):
        mt, t = divmod(bi, 6)
        for c in range(2):
            P(f"ds_write_b128 v{15 + mt}, {v(HR + 8 * bi + 4 * c, 4)} offset:{t * 2048 + c * 512}")
        if bi >= 9:
            P.extend(bias[2 * (bi - 9): 2 * (bi - 9) + 2])
        for i in range(4):
            P(f"v_lshlrev_b32 v{WF + 8 * bi + 2 * i}, 16, v{WP + 4 * bi + i}")
            P(f"v_and_b32 v{WF + 8 * bi + 2 * i + 1}, 0xffff0000, v{WP + 4 * bi + i}")
    P("s_mov_b32 s64, 0x00010001")
    P("s_mov_b32 s65, 0x00010001")
    P("s_mov_b64 exec, s[64:65]")
    for mt in range(6):
        P(f"ds_write_b128 v18, {a(AOL + 4 * mt, 4)} offset:{64 * mt}")
    P("s_mov_b64 exec, -1")
    P(f"""
    v_and_b32 v19, 3, v0
    v_mul_u32_u24 v15, 384, v19
    v_lshl_add_u32 v15, v12, 4, v15
    v_add_u32 v15, {BP}, v15
    v_lshlrev_b32 v14, 6, v19
    v_lshl_add_u32 v14, v12, 4, v14
    s_mul_i32 s47, {sW}, 768
    s_add_u32 s47, s47, {LH}
    v_add_u32 v14, s47, v14
    v_lshrrev_b32 v9, 2, v11
    v_cmp_eq_u32 vcc, v9, v12
    v_and_b32 v9, 1, v0
    v_lshlrev_b32 v9, 4, v9
    v_mov_b32 v{vSEL}, 0x3f80
    v_lshlrev_b32 v9, v9, v{vSEL}
    v_cndmask_b32 v9, 0, v9, vcc
    v_and_b32 v19, 2, v0
    v_cmp_eq_u32 vcc, 0, v19
    v_mov_b32 v{vSEL}, 0
    v_mov_b32 v{vSEL + 1}, 0
    v_cndmask_b32 v{vSEL + 2}, 0, v9, vcc
    v_cndmask_b32 v{vSEL + 3}, v9, 0, vcc
    v_mov_b32 v8, 0
    v_mov_b32 v9, 0
    """)
    P.wait_lgkm()
    P("s_barrier")
    stamp()
    for mt in range(6):
        P(f"ds_read_b128 {v(SV + 4 * mt, 4)}, v15 offset:{64 * mt}")
    for m in range(3):
        P(f"ds_read_b128 {a(AHL + 4 * m, 4)}, v14 offset:{256 * m}")
    hread = []
    for rel in range(4):
        hread += [f"s_add_u32 s47, {sW}, {rel}", "s_and_b32 s47, s47, 3", "s_mul_i32 s47, s47, 12288",
                  f"s_mul_i32 s48, {sW}, 3072", "s_add_u32 s47, s47, s48",
                  f"v_lshl_add_u32 v14, v0, 4, s47", "v_add_u32 v15, 65536, v14"]
        for m in range(3):
            for i in range(3):
                off = m * 49152 + i * 1024
                reg, off = (14, off) if off < 65536 else (15, off - 65536)
                hread.append(f"ds_read_b128 {a(AH + ((rel * 3 + m) * 3 + i) * 4, 4)}, v{reg} offset:{off}")
    dpp = [f"v_add_f32_dpp v{SV + r}, v{SV + r}, v{SV + r} quad_perm:{qp} row_mask:0xf bank_mask:0xf"
           for qp in ("[1,0,3,2]", "[2,3,0,1]") for r in range(24)]
    acc2 = lambda p, i, e: AC2 + (p * 3 + i) * 8 + 4 * e
    init = [f"{MF16} {v(acc2(p, i, e), 4)}, {v(vSEL + 2 - 2 * e, 4)}, {a(AX + (i * 3 + p) * 4, 4)}, "
            f"{v(SV + 4 * (2 * p + e), 4)}" for p in range(3) for i in range(3) for e in range(2)]
    init += [f"{MF16} {a(AOL + 4 * (2 * p + e), 4)}, {v(vSEL + 2 - 2 * e, 4)}, {a(AXL + 4 * p, 4)}, "
             f"{a(AOL + 4 * (2 * p + e), 4)}" for p in range(3) for e in range(2)]
    P.extend(hread[:16])
    P.extend(weave(dpp + init, hread[16:], per=1))
    P.wait_lgkm()
    P("s_barrier")
    stamp()

    P(f"""
    v_mov_b32 v11, 0
    s_mov_b32 s54, 0
    v_readfirstlane_b32 s47, v{vCNT}
    s_cmp_ge_u32 s47, {NWG}
    s_cbranch_scc1 L_CLEARED
    """)
    P.region_begin()
    P("L_CLRPOLL:")
    P(f"buffer_load_dword v{vCNT}, v11, {DBG}, 0 offen sc1")
    P(f"""
    v_readfirstlane_b32 s47, v{vCNT}
    s_add_u32 s54, s54, 1
    s_cmp_ge_u32 s54, 0x200000
    s_cbranch_scc1 L_CLEARED
    s_cmp_lt_u32 s47, {NWG}
    s_cbranch_scc1 L_CLRPOLL
    """)
    P.region_end()
    P("L_CLEARED:")
    P(f"s_cmp_ge_u32 s2, {NRED}")
    P("s_cbranch_scc1 L_NORED")
    P.region_begin()
    P(f"""
    s_lshl_b32 s47, s2, 14
    s_lshl_b32 s48, {sW}, 10
    s_add_u32 s47, s47, s48
    v_lshl_add_u32 v11, v0, 4, s47
    v_and_b32 v12, 15, v0
    s_lshl_b32 s48, s2, 5
    v_lshl_add_u32 v13, v12, 1, s48
    s_movk_i32 s55, 0x1000
    s_movk_i32 s56, 0x2000
    s_movk_i32 s57, 0x3000
    """)
    P(f"buffer_load_ushort v32, v13, {G}, 0 offen")
    P("L_H1POLL:")
    for k, so in enumerate(("0", "s55", "s56", "s57")):
        P(f"buffer_load_dwordx4 {v(16 + 4 * k, 4)}, v11, {WS}, {so} offen sc1")
    P("v_or_b32 v13, v16, v17")
    for k in range(18, 32, 2):
        P(f"v_or3_b32 v13, v13, v{k}, v{k + 1}")
    P(f"""
    v_cmp_gt_i32 vcc, 0, v13
    s_add_u32 s54, s54, 1
    s_cmp_ge_u32 s54, 0x200000
    s_cbranch_scc1 L_H1DONE
    s_cbranch_vccnz L_H1POLL
    L_H1DONE:
    v_pk_add_f32 v[16:17], v[16:17], v[20:21]
    v_pk_add_f32 v[18:19], v[18:19], v[22:23]
    v_pk_add_f32 v[24:25], v[24:25], v[28:29]
    v_pk_add_f32 v[26:27], v[26:27], v[30:31]
    v_pk_add_f32 v[16:17], v[16:17], v[24:25]
    v_pk_add_f32 v[18:19], v[18:19], v[26:27]
    """)
    for ror in (4, 8):
        for r in range(16, 20):
            P(f"v_add_f32_dpp v{r}, v{r}, v{r} row_ror:{ror} row_mask:0xf bank_mask:0xf")
    P(f"""
    v_permlane16_swap_b32 v16, v17
    v_permlane16_swap_b32 v18, v19
    v_and_b32 v13, 3, v0
    v_lshrrev_b32 v14, 4, v0
    v_add_f32 v16, v16, v17
    v_add_f32 v18, v18, v19
    v_lshl_add_u32 v13, v13, 2, v14
    s_lshl_b32 s47, {sW}, 2
    s_add_u32 s47, s47, {RS}
    v_permlane32_swap_b32 v16, v18
    v_lshl_add_u32 v13, v13, 4, s47
    v_add_f32 v16, v16, v18
    ds_write_b32 v13, v16
    v_lshlrev_b32 v13, 4, v12
    v_add_u32 v13, {RS}, v13
    """)
    P.wait_lgkm()
    P("s_barrier")
    P(f"""
    ds_read_b128 v[16:19], v13
    v_lshrrev_b32 v15, 1, v14
    s_lshl_b32 s47, {sW}, 1
    v_add_u32 v15, s47, v15
    v_and_b32 v14, 1, v14
    v_cmp_eq_u32 vcc, 1, v14
    v_mul_u32_u24 v14, 1536, v14
    v_lshl_add_u32 v14, v15, 12, v14
    v_lshl_add_u32 v14, v12, 2, v14
    s_lshl_b32 s47, s2, 6
    s_add_u32 s47, s47, {H2}
    v_lshlrev_b32 v32, 16, v32
    v_mov_b32 v20, {f32(1e-6)}
    v_pk_add_f32 v[16:17], v[16:17], v[18:19]
    v_add_f32 v16, v16, v17
    v_fmac_f32 v20, {f32(KAP * KAP)}, v16
    v_sqrt_f32 v20, v20
    v_mul_f32 v21, v32, v20
    v_cndmask_b32 v20, v20, v21, vcc
    """)
    P(f"buffer_store_dword v20, v14, {WS}, s47 offen sc1")
    P.region_end()
    P("L_NORED:")
    stamp()
    P(f"""
    s_and_b32 s47, s2, {NREP - 1}
    s_lshl_b32 s47, s47, 12
    s_add_u32 s47, s47, {H2}
    v_lshl_add_u32 v10, v0, 4, s47
    v_lshl_add_u32 v11, v0, 3, s47
    v_lshrrev_b32 v12, 5, v0
    v_bfe_u32 v13, v0, 4, 1
    v_lshlrev_b32 v13, 4, v13
    v_lshl_add_u32 v12, v12, 6, v13
    s_mul_i32 s48, {sW}, 384
    s_add_u32 s47, s47, s48
    s_add_u32 s47, s47, 1536
    v_add_u32 v13, s47, v12
    s_mul_i32 s47, {sW}, 6144
    v_lshl_add_u32 v12, v0, 4, s47
    s_mov_b32 s62, {f32(KAP)}
    s_mov_b32 s63, {f32(KAP)}
    """)
    P.wait_vm_all()
    P("L_H2POLL:")
    P(f"buffer_load_dwordx4 v[4:7], v10, {WS}, 0 offen sc1")
    P(f"buffer_load_dwordx2 v[8:9], v11, {WS}, 0 offen offset:1024 sc1")
    for j in range(3):
        for h in range(2):
            P(f"buffer_load_dwordx4 {v(SV + 8 * j + 4 * h, 4)}, v13, {WS}, 0 offen offset:{128 * j + 32 * h} sc1")
    P("v_max3_u32 v14, v4, v5, v6")
    P("v_max3_u32 v15, v7, v8, v9")
    for k in range(12):
        r = 14 + k % 2
        P(f"v_max3_u32 v{r}, v{r}, v{SV + 2 * k}, v{SV + 2 * k + 1}")
    P(f"""
    v_max_u32 v14, v14, v15
    v_cmp_eq_u32 vcc, -1, v14
    s_add_u32 s54, s54, 1
    s_cmp_ge_u32 s54, 0x200000
    s_cbranch_scc1 L_H2DONE
    s_cbranch_vccz L_H2DONE
    s_sleep 1
    s_branch L_H2POLL
    L_H2DONE:
    """)
    stamp()
    P(f"""
    v_pk_add_f32 v[4:5], v[4:5], v[6:7]
    v_pk_add_f32 v[4:5], v[4:5], v[8:9]
    v_add_f32 v4, v4, v5
    """)
    for ror in (1, 2, 4, 8):
        P(f"v_add_f32_dpp v4, v4, v4 row_ror:{ror} row_mask:0xf bank_mask:0xf")
    P(f"""
    v_mov_b32 v5, v4
    v_permlane16_swap_b32 v4, v5
    v_add_f32 v4, v4, v5
    v_mov_b32 v5, v4
    v_permlane32_swap_b32 v4, v5
    v_mov_b32 v6, {f32(1e-6)}
    v_add_f32 v4, v4, v5
    v_fmac_f32 v6, {f32(1 / 384)}, v4
    v_rcp_f32 v6, v6
    v_mul_f32 v6, {f32(KAP)}, v6
    """)
    for k in range(12):
        P(f"v_pk_fma_f32 {v(SV + 2 * k, 2)}, {v(SV + 2 * k, 2)}, v[6:7], s[62:63] op_sel_hi:[1,0,1]")
    dump("s", [f"v{SV + i}" for i in range(24)], "v7")

    RING, NRING = 144, 15

    def scale(p, packed):
        o = []
        for j in range(3):
            for e in range(2):
                b0 = WF + 8 * fidx(p, j, e)
                for i in range(4):
                    if packed:
                        o.append(f"v_pk_mul_f32 {v(b0 + 2 * i, 2)}, {v(b0 + 2 * i, 2)}, {v(SV + 8 * j + 2 * i, 2)}")
                    else:
                        for h in range(2):
                            o.append(f"v_mul_f32 v{b0 + 2 * i + h}, v{b0 + 2 * i + h}, v{SV + 8 * j + 2 * i + h}")
                for i in range(4):
                    o.append(f"v_cvt_pk_bf16_f32 v{b0 + i}, v{b0 + 2 * i}, v{b0 + 2 * i + 1}")
                o.append(f"ds_write_b128 v12, {v(b0, 4)} offset:{p * 24576 + (2 * j + e) * 1024}")
        return o

    def epilogue(p):
        o = []
        for i in range(3):
            b0 = acc2(p, i, 0)
            for k in range(4):
                o.append(f"v_cvt_pk_bf16_f32 v{b0 + k}, v{b0 + 2 * k}, v{b0 + 2 * k + 1}")
            o.append(f"buffer_store_dwordx4 {v(b0, 4)}, v{vO + i}, {OUT}, 0 offen offset:{64 * p}{opt['st']}")
        return o

    P.extend(scale(0, True))
    ring = 0
    for p in range(3):
        mm, reads = [], []
        for j in range(3):
            for e in range(2):
                A = v(WF + 8 * fidx(p, j, e), 4)
                for i in range(3):
                    d = v(acc2(p, i, e), 4)
                    mm.append(f"{MF16} {d}, {A}, {a(AH + (j * 3 + i) * 4, 4)}, {d}")
                d = a(AOL + 4 * (2 * p + e), 4)
                mm.append(f"{MF16} {d}, {A}, {a(AHL + 4 * j, 4)}, {d}")
        for rel in range(1, 4):
            for j in range(3):
                for e in range(2):
                    slot = RING + 4 * (ring % NRING)
                    k = len(reads)
                    reads.append(f"ds_read_b128 {a(slot, 4)}, v{12 + rel} offset:{p * 24576 + (2 * j + e) * 1024}")
                    ring += 1
                    for i in range(3):
                        d = v(acc2(p, i, e), 4)
                        mm.append(f"{MF16} {d}, {a(slot, 4)}, {a(AH + ((rel * 3 + j) * 3 + i) * 4, 4)}, {d}")
        fill = []
        if p == 0:
            for rel in range(1, 4):
                fill += [f"s_add_u32 s47, {sW}, {rel}", "s_and_b32 s47, s47, 3", "s_mul_i32 s47, s47, 6144",
                         f"v_lshl_add_u32 v{12 + rel}, v0, 4, s47"]
        fill += [("wait_lgkm", None), "s_barrier"] + reads[:12]
        if p > 0:
            fill += epilogue(p - 1)
        rest = scale(p + 1, False) if p < 2 else []
        if p == 2:
            rest = [f"v_and_b32 v4, 15, v0", "v_lshrrev_b32 v5, 4, v0", "v_mul_u32_u24 v4, 384, v4",
                    "v_lshl_add_u32 v4, v5, 5, v4", f"s_mul_i32 s47, {sW}, 1536", f"s_add_u32 s47, s47, {LO}",
                    "v_add_u32 v4, s47, v4", "s_mov_b32 s64, 0x000f000f", "s_mov_b32 s65, 0x000f000f",
                    ("at", 27)]
            rest.append("\n".join(["s_mov_b64 exec, s[64:65]"] + [
                f"ds_write_b128 v4, {a(AOL + 4 * mt, 4)} offset:{(mt // 2) * 128 + (mt % 2) * 16}"
                for mt in range(6)] + ["s_mov_b64 exec, -1"]))
            rest += ["v_mul_u32_u24 v5, 5462, v0", "v_lshrrev_b32 v5, 16, v5",
                     "v_mad_i32_i24 v6, v5, -12, v0", "v_lshrrev_b32 v7, 1, v5", "v_mul_u32_u24 v7, 43008, v7",
                     "v_and_b32 v5, 1, v5", "v_mul_u32_u24 v5, 192, v5", "v_add3_u32 v5, v5, v7, s53",
                     "v_lshl_add_u32 v5, v6, 4, v5", "v_cmp_gt_u32 vcc, 48, v0", f"s_cmp_eq_u32 {sW}, 0",
                     "s_cselect_b64 s[64:65], -1, 0", "s_and_b64 vcc, vcc, s[64:65]", f"v_mov_b32 v6, {OOB}",
                     "v_min_u32 v7, 47, v0", "v_cndmask_b32 v5, v6, v5, vcc", "v_lshlrev_b32 v7, 5, v7",
                     f"v_add_u32 v7, {LO}, v7"]
        for k in range(12, 18):
            fill += rest[: len(rest) // (19 - k)]
            rest = rest[len(rest) // (19 - k):]
            fill += [("at", 24 + 3 * max(0, k - NRING + 1) if k >= NRING else 0), reads[k]]
        fill += rest
        if p == 2:
            fill += [("wait_lgkm", None), "s_barrier"]
            for w_ in range(4):
                for e in range(2):
                    fill.append(f"ds_read_b128 {v(40 + 8 * w_ + 4 * e if w_ < 3 else 16 + 4 * e, 4)}, v7 "
                                f"offset:{w_ * 1536 + 16 * e}")
            for k in range(8):
                fill.append(f"v_add_f32 v{40 + k}, v{40 + k}, v{48 + k}")
                fill.append(f"v_add_f32 v{16 + k}, v{16 + k}, v{56 + k}")
            for k in range(8):
                fill.append(f"v_add_f32 v{40 + k}, v{40 + k}, v{16 + k}")
            for k in range(4):
                fill.append(f"v_cvt_pk_bf16_f32 v{40 + k}, v{40 + 2 * k}, v{41 + 2 * k}")
            fill.append(f"buffer_store_dwordx4 v[40:43], v5, {OUT}, 0 offen{opt['st']}")
        seq = weave(mm, fill, per=2)
        for k, rd_ in enumerate(reads):
            assert seq.index(rd_) < seq.index(mm[24 + 3 * k]), (p, k)
            if k >= NRING:
                assert seq.index(rd_) > seq.index(mm[24 + 3 * (k - NRING) + 2]), (p, k)
        P.extend(seq)
    P.extend(epilogue(2))
    stamp()
    if opt["stamps"]:
        P.wait_vm_all()
        stamp()
        P.wait_lgkm()
        P(f"s_lshl_b32 s47, s2, 2")
        P(f"s_add_u32 s47, s47, {sW}")
        P(f"s_lshl_b32 s47, s47, 6")
        P(f"s_add_u32 s47, s47, {DIAG}")
        P("v_mov_b32 v4, 0")
        for k in range(nstamp[0]):
            P(f"v_mov_b32 v5, s{72 + 2 * k}")
            P(f"buffer_store_dword v5, v4, {WS}, s47 offen offset:{4 * k}")
    P("L_END:")
    P("s_endpgm")
    P("L_CODE_END:")
    body = P.render()
    head = open(f"cdna_kernels/{NAME}.s.ref").read().split("\n")
    head = [x for x in head[: next(i for i, y in enumerate(head) if "@launch" in y)]]
    text = "\n".join(head) + f"""
; @launch grid=({NWG},1,1) block=(256,1,1) lds={LDS_BYTES}
.amdgcn_target "amdgcn-amd-amdhsa--gfx950"
.text
.globl {NAME}_kernel
.p2align 8
.type {NAME}_kernel,@function
{NAME}_kernel:
{body}.section .rodata,"a"
.p2align 6
.amdhsa_kernel {NAME}_kernel
  .amdhsa_next_free_vgpr 512
  .amdhsa_next_free_sgpr 102
  .amdhsa_accum_offset 256
  .amdhsa_group_segment_fixed_size 0
  .amdhsa_kernarg_size 72
  .amdhsa_user_sgpr_count 2
  .amdhsa_user_sgpr_kernarg_segment_ptr 1
  .amdhsa_system_sgpr_workgroup_id_x 1
  .amdhsa_float_denorm_mode_32 3
.end_amdhsa_kernel
"""
    return text, P


if __name__ == "__main__":
    out = sys.argv[1] if len(sys.argv) > 1 else f"cdna_kernels/{NAME}.s"
    opt = eval(sys.argv[2]) if len(sys.argv) > 2 else {}
    text, P = generate(opt)
    open(out, "w").write(text)
    n = sum(1 for x in P.final if x.kind != "meta")
    print(f"{out}: {n} instructions, {P.pads} padded wait states")
```

```python
import math
import struct
import sys

from asmlib import Prog, weave

NAME = "standalone__modern_conv_block_slak__vision"
NWG = 256
NRED = 24
NREP = 8
OOB = 0x80000000

WS_, WSL = 0, 18432
XP, XPAIR, XROW, XPX = 73728, 6752, 3328, 208
LN0 = 127744
DWC = 152320
LH, BP, LO, RS = 152320, 155392, 156928, 163072
LDS_BYTES = 163840
H1, H1P = 0, 16384
H2 = NRED * H1P
WS_BYTES = H2 + NREP * 4096
DIAG = 1 << 20

C0 = 2 * math.log2(math.e) * math.sqrt(2 / math.pi)
KAP = (C0 * 0.044715) ** (-1 / 3)
KC = -C0 * KAP


def f32(x):
    return "0x%08x" % struct.unpack("<I", struct.pack("<f", x))[0]


def v(a, n=1):
    return f"v{a}" if n == 1 else f"v[{a}:{a + n - 1}]"


def a(x, n=1):
    return f"a{x}" if n == 1 else f"a[{x}:{x + n - 1}]"


X, DW, W1, W2, G, B, OUT, DBG, WS = ("s[4:7]", "s[12:15]", "s[16:19]", "s[20:23]", "s[24:27]",
                                     "s[28:31]", "s[32:35]", "s[36:39]", "s[40:43]")
sW, sY0, sX0 = "s44", "s45", "s46"
MF16, MF32 = "v_mfma_f32_16x16x32_bf16", "v_mfma_f32_32x32x16_bf16"


def generate(opt=None):
    opt = dict(stamps=False, dump=None, st="", prefetch=True) | (opt or {})
    P = Prog()
    nstamp = [0]

    def stamp(name=None):
        if opt["stamps"] and (name == "first" or name == opt.get("fine")):
            k = nstamp[0]
            P(f"{'s_memtime' if opt['stamps'] == 'cyc' else 's_memrealtime'} s[{72 + 2 * k}:{73 + 2 * k}]")
            nstamp[0] += 1

    def dump(name, regs, tmp):
        if opt["dump"] != name:
            return
        P(f"s_mul_i32 s3, s2, {len(regs) * 1024}")
        P(f"s_lshl_b32 s47, {sW}, 8")
        P(f"s_add_u32 s3, s3, s47")
        P(f"s_add_u32 s3, s3, {DIAG + 65536}")
        P(f"v_mbcnt_lo_u32_b32 {tmp}, -1, 0")
        P(f"v_mbcnt_hi_u32_b32 {tmp}, -1, {tmp}")
        P(f"v_lshlrev_b32 {tmp}, 2, {tmp}")
        for r in regs:
            P(f"buffer_store_dword {r}, {tmp}, {WS}, s3 offen")
            P("s_add_u32 s3, s3, 1024")
        P.wait_vm_all()

    P(f"s_cmp_ge_u32 s2, {NWG}")
    P("s_cbranch_scc1 L_END")
    stamp("first")
    if opt.get("dbgtime"):
        P("s_memrealtime s[96:97]")
        P("s_memtime s[98:99]")
    for srd, off in ((4, 0), (12, 8), (16, 16), (40, 64), (36, 56), (20, 24), (24, 32), (28, 40), (32, 48)):
        P(f"s_load_dwordx2 s[{srd}:{srd + 1}], s[0:1], {off}")
    if opt["prefetch"]:
        P("s_getpc_b64 s[66:67]")
        P("L_PC:")
        P("v_lshlrev_b32 v1, 7, v0")
        P("v_min_u32 v1, L_CODE_END-L_PC-4, v1")
        P("global_load_dword v2, v1, s[66:67]")
    P(f"""
    v_lshrrev_b32 v3, 6, v0
    v_and_b32 v0, 63, v0
    v_readfirstlane_b32 {sW}, v3
    s_and_b32 s47, s2, 7
    s_lshr_b32 s48, s2, 3
    s_lshr_b32 s49, s47, 1
    s_lshl_b32 s49, s49, 2
    s_lshr_b32 s50, s48, 3
    s_add_u32 s49, s49, s50
    s_mul_i32 {sY0}, s49, 14
    s_and_b32 s47, s47, 1
    s_lshl_b32 s47, s47, 3
    s_and_b32 s48, s48, 7
    s_add_u32 s47, s47, s48
    s_mul_i32 {sX0}, s47, 14
    s_sub_u32 s47, {sX0}, 1
    s_mul_i32 s48, s47, 192
    s_movk_i32 s49, 224
    v_mov_b32 v8, {OOB}
    """)
    for i in range(4):
        P(f"""
        v_add_u32 v9, {64 * i}, v0
        v_mul_u32_u24 v10, 5042, v9
        v_lshrrev_b32 v10, 16, v10
        v_mad_i32_i24 v11, v10, -13, v9
        v_add_u32 v12, s47, v10
        v_sub_u32 v9, v9, v10
        v_cmp_gt_u32 vcc, 12, v11
        v_cmp_gt_u32 s[64:65], s49, v12
        v_lshl_add_u32 v9, v9, 4, s48
        s_and_b64 vcc, vcc, s[64:65]
        v_cndmask_b32 v{4 + i}, v8, v9, vcc
        """)
    diag = opt["stamps"] or opt["dump"]
    for srd, size in ((4, 9633792), (12, 1728), (16, 73728), (20, 73728), (24, 768), (28, 768),
                      (32, 9633792), (36, 256), (40, (64 << 20) if diag else WS_BYTES)):
        P(f"s_mov_b32 s{srd + 2}, {size}")
        P(f"s_mov_b32 s{srd + 3}, 0x20000")
    P(f"""
    v_lshlrev_b32 v9, 4, v0
    s_lshl_b32 s47, {sW}, 11
    s_add_u32 m0, s47, {DWC}
    """)
    stamp("p0")
    P(f"buffer_load_dwordx4 v9, {DW}, 0 offen lds", "dw")
    P(f"buffer_load_dwordx4 v9, {DW}, 0 offen offset:1024 lds", "dw")

    def xrow(k):
        P(f"""
        s_add_u32 s47, {sW}, {4 * k}
        s_add_u32 s48, s47, {sY0}
        s_sub_u32 s48, s48, 1
        s_cmp_lt_u32 s48, 224
        s_cselect_b32 s6, 9633792, 0
        s_cselect_b32 s48, s48, 0
        s_mul_i32 s48, s48, 43008
        s_lshr_b32 s49, s47, 1
        s_mul_i32 s49, s49, {XPAIR}
        s_and_b32 s47, s47, 1
        s_mul_i32 s47, s47, {XROW}
        s_add_u32 s47, s47, s49
        s_add_u32 m0, s47, {XP}
        """)
        for i in range(4):
            if i == 3:
                P("s_mov_b64 exec, 0xffff")
            P(f"buffer_load_dwordx4 v{4 + i}, {X}, s48 offen lds", f"x{k}")
            if i < 3:
                P("s_add_u32 m0, m0, 1024")
        P("s_mov_b64 exec, -1")

    for k in range(3):
        xrow(k)
    stamp("p0")
    xrow(3)
    stamp("p0")
    P("s_mov_b32 s6, 9633792")
    P(f"s_mul_i32 s47, {sW}, 192")
    for i in range(3):
        P(f"""
        v_add_u32 v10, {64 * i}, v0
        v_mul_u32_u24 v11, 5462, v10
        v_lshrrev_b32 v11, 16, v11
        v_mul_u32_u24 v11, 576, v11
        v_lshl_add_u32 v10, v10, 4, s47
        v_add_u32 v{4 + i}, v10, v11
        """)
    P(f"s_mul_i32 s50, {sW}, {WSL}")
    P("s_mov_b32 m0, s50")
    for blk in range(6):
        P(f"s_mov_b32 s48, {blk * 12288}")
        for i in range(3):
            P(f"buffer_load_dwordx4 v{4 + i}, {W1}, s48 offen lds", "w1")
            if blk * 3 + i < 17:
                P("s_add_u32 m0, m0, 1024")
    P(f"""
    v_mov_b32 v20, -1
    v_mov_b32 v21, -1
    v_mov_b32 v22, -1
    v_mov_b32 v23, -1
    s_mul_i32 s47, {sW}, {6 * H1P}
    s_lshl_b32 s48, s2, 6
    s_add_u32 s47, s47, s48
    v_lshrrev_b32 v10, 2, v0
    v_and_b32 v11, 3, v0
    v_lshlrev_b32 v11, 4, v11
    v_lshl_add_u32 v12, v10, 14, v11
    v_add_u32 v12, s47, v12
    v_cmp_gt_u32 vcc, 24, v0
    s_add_u32 s48, s48, {H2}
    v_lshrrev_b32 v13, 3, v0
    v_cndmask_b32 v12, v8, v12, vcc
    v_and_b32 v10, 1, v10
    v_mul_u32_u24 v10, 1536, v10
    v_lshl_add_u32 v13, v13, 12, v11
    v_add3_u32 v13, v13, v10, s48
    s_cmp_lt_u32 s2, {NRED}
    s_cselect_b64 s[64:65], -1, 0
    s_cmp_eq_u32 {sW}, 0
    s_cselect_b64 vcc, s[64:65], 0
    v_cndmask_b32 v13, v8, v13, vcc
    """)
    P(f"buffer_store_dwordx4 v[20:23], v12, {WS}, 0 offen sc1", "clr")
    P(f"buffer_store_dwordx4 v[20:23], v13, {WS}, 0 offen sc1", "clr")
    stamp()
    stamp("p0")

    vN, vG, vM0, vDW, vB1, vB2, vL1, vL2, vW1, vR0, vR1 = 1, 2, 4, 12, 13, 14, 15, 16, 17, 18, 19
    P(f"""
    v_and_b32 v{vN}, 15, v0
    v_lshrrev_b32 v{vG}, 4, v0
    v_lshrrev_b32 v9, 3, v{vN}
    v_sub_u32 v9, v{vG}, v9
    v_cmp_gt_u32 vcc, 3, v9
    v_and_b32 v10, 1, v0
    v_lshlrev_b32 v10, 4, v10
    v_mov_b32 v11, 0xffff
    v_lshlrev_b32 v10, v10, v11
    v_cndmask_b32 v10, 0, v10, vcc
    v_cndmask_b32 v9, 0, v9, vcc
    v_mul_u32_u24 v9, 576, v9
    s_lshl_b32 s47, {sW}, 11
    s_add_u32 s47, s47, {DWC}
    v_add_u32 v{vDW}, s47, v9
    v_bfe_u32 v11, v0, 1, 2
    """)
    for i in range(4):
        P(f"v_cmp_eq_u32 vcc, {i}, v11")
        P(f"v_cndmask_b32 v{vM0 + i}, 0, v10, vcc")
    P(f"""
    v_lshrrev_b32 v20, 1, v{vG}
    v_and_b32 v21, 1, v{vG}
    v_mul_u32_u24 v22, {XPAIR}, v20
    v_mul_u32_u24 v23, {XROW}, v21
    v_add_u32 v22, v22, v23
    v_add_u32 v22, {XP}, v22
    """)
    for dst, t0 in ((vB1, 0), (vB2, 4)):
        P(f"""
        s_add_u32 s47, {sW}, {t0}
        s_lshl_b32 s47, s47, 4
        v_add_u32 v9, s47, v{vN}
        v_min_u32 v9, 97, v9
        v_mul_u32_u24 v10, 4682, v9
        v_lshrrev_b32 v10, 16, v10
        v_mul_u32_u24 v9, {XPX}, v9
        v_mul_u32_u24 v10, {XPAIR - 14 * XPX}, v10
        v_add3_u32 v{dst}, v9, v10, v22
        """)
    P(f"""
    v_lshl_add_u32 v9, v20, 4, v{vN}
    v_lshl_add_u32 v10, v20, 2, v{vN}
    v_add_u32 v11, 8, v{vN}
    v_cmp_gt_u32 vcc, 2, v{vN}
    s_cmp_eq_u32 {sW}, 2
    s_cselect_b64 s[64:65], -1, 0
    v_cndmask_b32 v10, v11, v10, vcc
    v_cndmask_b32 v10, v9, v10, s[64:65]
    v_lshlrev_b32 v21, 9, v21
    s_mul_i32 s47, {sW}, 6144
    s_add_u32 s48, s47, {LN0}
    s_add_u32 s49, s47, {XP}
    v_lshl_add_u32 v9, v9, 4, v21
    v_lshl_add_u32 v10, v10, 4, v21
    v_add_u32 v{vL1}, s48, v9
    v_add_u32 v{vL2}, s49, v10
    v_lshrrev_b32 v9, 2, v{vN}
    v_lshl_add_u32 v9, v20, 2, v9
    v_mul_u32_u24 v9, 192, v9
    v_and_b32 v10, 3, v0
    v_lshlrev_b32 v10, 3, v10
    v_bfe_u32 v11, v0, 4, 1
    v_lshl_add_u32 v10, v11, 5, v10
    v_add3_u32 v{vW1}, v9, v10, s50
    v_lshlrev_b32 v9, 4, v0
    v_add_u32 v{vR0}, {LN0}, v9
    v_add_u32 v{vR1}, {XP}, v9
    s_mov_b32 s60, {f32(KC)}
    s_mov_b32 s61, {f32(KC)}
    """)
    CA, CD = 112, 64
    P.wait_vm("dw")
    stamp("p0")
    rd = [f"ds_read_b128 {v(CA + 4 * f, 4)}, v{vDW} offset:{16 * f}" for f in range(36)]
    for f in range(8):
        P(rd[f])
    for f in range(36):
        if f + 8 < 36:
            P(rd[f + 8])
        for i in range(4):
            P(f"v_and_b32 v{CA + 4 * f + i}, v{vM0 + i}, v{CA + 4 * f + i}")
    stamp("p0")
    P.wait_vm("x2")
    P("s_barrier")
    stamp()
    stamp("p0")

    def conv_ln(vB, vL):
        rds = [f"ds_read_b128 {a(4 * (cg * 3 + dx), 4)}, v{vB} offset:{dx * XPX + cg * 16}"
               for cg in range(12) for dx in range(3)]
        for k in range(8):
            P(rds[k])
        for k in range(36):
            cg, dx = divmod(k, 3)
            if k + 8 < 36:
                P(rds[k + 8])
            d = v(CD + 4 * cg, 4)
            P(f"{MF16} {d}, {v(CA + 4 * (dx * 12 + cg), 4)}, {a(4 * k, 4)}, {d if dx else 0}")
        stamp("p0")
        pr = lambda i: v(CD + 2 * i, 2)
        P(f"v_pk_add_f32 v[20:21], {pr(0)}, {pr(1)}")
        P(f"v_pk_mul_f32 v[22:23], {pr(0)}, {pr(0)}")
        P(f"v_pk_add_f32 v[24:25], {pr(2)}, {pr(3)}")
        P(f"v_pk_mul_f32 v[26:27], {pr(1)}, {pr(1)}")
        for i in range(2, 24):
            if i >= 4:
                s = "v[20:21]" if i % 2 == 0 else "v[24:25]"
                P(f"v_pk_add_f32 {s}, {s}, {pr(i)}")
            q = "v[22:23]" if i % 2 == 0 else "v[26:27]"
            P(f"v_pk_fma_f32 {q}, {pr(i)}, {pr(i)}, {q}")
        P(f"""
        v_pk_add_f32 v[20:21], v[20:21], v[24:25]
        v_pk_add_f32 v[22:23], v[22:23], v[26:27]
        v_add_f32 v20, v20, v21
        v_add_f32 v22, v22, v23
        v_permlane16_swap_b32 v20, v22
        v_add_f32 v20, v20, v22
        v_mov_b32 v22, v20
        v_permlane16_swap_b32 v20, v22
        v_mul_f32 v20, {f32(1 / 96)}, v20
        v_mul_f32 v22, {f32(1 / 96)}, v22
        v_fma_f32 v22, -v20, v20, v22
        v_max_f32 v22, 0, v22
        v_add_f32 v22, {f32(1e-5)}, v22
        v_rsq_f32 v22, v22
        v_mul_f32 v22, {f32(1 / KAP)}, v22
        v_mul_f32 v23, -v20, v22
        """)
        for s in range(6):
            for i in range(4):
                r = pr(4 * s + i)
                P(f"v_pk_fma_f32 {r}, {r}, v[22:23], v[22:23] op_sel:[0,0,1] op_sel_hi:[1,0,1]")
            for i in range(4):
                P(f"v_cvt_pk_bf16_f32 v{CD + 8 * s + i}, v{CD + 8 * s + 2 * i}, v{CD + 8 * s + 2 * i + 1}")
            P(f"ds_write_b128 v{vL}, {v(CD + 8 * s, 4)} offset:{1024 * s}")

    conv_ln(vB1, vL1)
    stamp("p0")
    P.wait_vm("x3")
    P.wait_lgkm()
    P("s_barrier")
    stamp()
    stamp("p0")
    P(f"s_cmp_eq_u32 {sW}, 3")
    P("s_cbranch_scc1 L_NOCONV2")
    P.region_begin()
    conv_ln(vB2, vL2)
    P.region_end()
    P("L_NOCONV2:")
    stamp("p0")
    AW1, ALN, ALL = 144, 0, 216
    P.wait_vm("clr")
    for mt in range(3):
        for s in range(6):
            for e in range(2):
                P(f"ds_read_b64_tr_b16 {a(AW1 + (mt * 6 + s) * 4 + 2 * e, 2)}, v{vW1} "
                  f"offset:{s * 3072 + e * 1536 + mt * 64}")
    P.wait_lgkm()
    P("s_barrier")
    stamp()
    stamp("p0")
    P(f"""
    v_cmp_eq_u32 vcc, 0, v0
    s_cmp_eq_u32 {sW}, 0
    s_cselect_b64 s[64:65], -1, 0
    s_and_b64 vcc, vcc, s[64:65]
    v_mov_b32 v9, 1
    v_cndmask_b32 v10, v8, 0, vcc
    """)
    P(f"buffer_atomic_add v9, v10, {DBG}, 0 offen")

    SS, ACC, TMP, HR = 48, (64, 80), 96, 112
    RED, TL, vPUB, vBP, vLH = 20, 26, 44, 45, 46
    DL = HR + 96

    def ln_read(t, s):
        base, off = (vR0, t * 6144) if t < 4 else (vR1, (t - 4) * 6144)
        dst = ALN + (t * 6 + s) * 4 if t < 6 else ALL + 4 * s
        return f"ds_read_b128 {a(dst, 4)}, v{base} offset:{off + 1024 * s}"

    def mm1(bi):
        mt, t = divmod(bi, 6)
        d = v(ACC[bi % 2], 16)
        return [f"{MF32} {d}, {a(AW1 + (mt * 6 + s) * 4, 4)}, {a(ALN + (t * 6 + s) * 4, 4)}, {d if s else 0}"
                for s in range(6)]

    left = [f"{MF32} {v(DL + 16 * m, 16)}, {a(ALL + 4 * s, 4)}, {a(AW1 + (m * 6 + s) * 4, 4)}, "
            f"{v(DL + 16 * m, 16) if s else 0}" for m in range(3) for s in range(6)]

    stamp("p1")
    for s in range(6):
        P(ln_read(0, s))
    fill = [ln_read(t, s) for t in (1, 6, 2, 3, 4, 5) for s in range(6)]
    P.extend(weave(mm1(0), fill, per=6))
    P(f"""
    v_bfe_u32 v9, v0, 4, 1
    v_lshrrev_b32 v10, 5, v0
    v_bfe_u32 v11, v0, 2, 1
    v_bfe_u32 v12, v0, 3, 1
    v_lshlrev_b32 v13, 3, v9
    v_lshl_add_u32 v13, v10, 2, v13
    v_lshl_add_u32 v13, v11, 1, v13
    v_add_u32 v13, v13, v12
    v_lshlrev_b32 v{vBP}, 2, v13
    s_mul_i32 s47, {sW}, {6 * H1P}
    s_lshl_b32 s48, s2, 6
    s_add_u32 s47, s47, s48
    v_and_b32 v14, 3, v0
    v_cmp_eq_u32 vcc, 0, v14
    v_add_u32 v13, s47, v{vBP}
    v_lshl_add_u32 v15, v9, 1, v11
    v_cndmask_b32 v{vPUB}, v8, v13, vcc
    v_lshl_add_u32 v14, v12, 2, v14
    v_lshlrev_b32 v14, 1, v14
    v_lshl_add_u32 v14, v15, 4, v14
    v_lshl_add_u32 v14, v10, 7, v14
    s_mul_i32 s47, {sW}, 768
    s_add_u32 s47, s47, {LH}
    v_add_u32 v{vLH}, s47, v14
    v_lshlrev_b32 v9, 4, v0
    v_add_u32 v9, s50, v9
    """)
    for k in range(18):
        if k % 4 == 0:
            P(f"s_add_u32 m0, s50, {k * 1024}")
            P(f"s_mov_b32 s48, {k * 1024}")
        P(f"buffer_load_dwordx4 v9, {W2}, s48 offen offset:{(k % 4) * 1024} lds", "w2")

    def reduce_ss(mt):
        o = []
        for r in range(0, 16, 2):
            o.append(f"v_add_f32_dpp v{SS + r}, v{SS + r}, v{SS + r} row_ror:8 row_mask:0xf bank_mask:0x3")
        for r in range(0, 16, 2):
            o.append(f"v_add_f32_dpp v{SS + r}, v{SS + r + 1}, v{SS + r + 1} row_ror:8 row_mask:0xf bank_mask:0xc")
        for r in range(0, 16, 4):
            o.append(f"v_add_f32_dpp v{SS + r}, v{SS + r}, v{SS + r} row_half_mirror row_mask:0xf bank_mask:0x5")
        for r in range(0, 16, 4):
            o.append(f"v_add_f32_dpp v{SS + r}, v{SS + r + 2}, v{SS + r + 2} row_half_mirror row_mask:0xf bank_mask:0xa")
        for h in range(2):
            o.append(f"v_permlane16_swap_b32 v{SS + 8 * h}, v{SS + 8 * h + 4}")
        for h in range(2):
            o.append(f"v_add_f32 v{RED + 2 * mt + h}, v{SS + 8 * h}, v{SS + 8 * h + 4}")
        for qp in ("[2,3,0,1]", "[1,0,3,2]"):
            for h in range(2):
                r = RED + 2 * mt + h
                o.append(f"v_add_f32_dpp v{r}, v{r}, v{r} quad_perm:{qp} row_mask:0xf bank_mask:0xf")
        return o

    def publish(mt):
        o = []
        for h in range(2):
            r = RED + 2 * mt + h
            o.append(f"v_add_f32 v{r}, v{r}, v{38 + 2 * mt + h}")
        for h in range(2):
            r = RED + 2 * mt + h
            o.append(f"v_and_b32 v{r}, 0x7fffffff, v{r}")
        for h in range(2):
            o.append(f"s_mov_b32 s47, {(2 * mt + h) * H1P}")
            o.append(f"buffer_store_dword v{RED + 2 * mt + h}, v{vPUB}, {WS}, s47 offen sc1")
        return o

    for bi in range(18):
        mt, t = divmod(bi, 6)
        if bi in (0, 1, 2, 4, 6, 8, 10, 11, 12, 14, 16):
            stamp("p1")
        src = ACC[bi % 2]
        prs = [(src + 2 * i, TMP + 2 * i) for i in range(8)]
        if bi == 10:
            prs += [(DL + 16 * m, TL + 2 * m) for m in range(3)]
        p2 = lambda r: v(r, 2)
        M = mm1(bi + 1) if bi < 17 else []
        m1, m2 = M[:3], M[3:]
        if bi < 9:
            m1 = m1[:1] + [left[2 * bi]] + m1[1:]
            m2 = m2[:1] + [left[2 * bi + 1]] + m2[1:]
        for s_, t_ in prs:
            P(f"v_pk_fma_f32 {p2(t_)}, {p2(s_)}, {p2(s_)}, s[60:61] neg_lo:[1,0,0] neg_hi:[1,0,0]")
        for s_, t_ in prs:
            P(f"v_pk_mul_f32 {p2(t_)}, {p2(s_)}, {p2(t_)}")

        def tphase(op, ms):
            tr = [f"{op} v{t_ + h}, v{t_ + h}" for _, t_ in prs for h in range(2)]
            for k, x in enumerate(tr):
                if k % 3 == 0 and k // 3 < len(ms):
                    P(ms[k // 3])
                P(x)

        tphase("v_exp_f32", m1)
        for s_, t_ in prs:
            P(f"v_pk_add_f32 {p2(t_)}, {p2(t_)}, 1.0 op_sel_hi:[1,0]")
        tphase("v_rcp_f32", m2)
        for s_, t_ in prs:
            P(f"v_pk_mul_f32 {p2(t_)}, {p2(s_)}, {p2(t_)}")
        for i in range(8):
            y, s_ = p2(TMP + 2 * i), p2(SS + 2 * i)
            P(f"v_pk_fma_f32 {s_}, {y}, {y}, {s_}" if t else f"v_pk_mul_f32 {s_}, {y}, {y}")
        cvt = [f"v_cvt_pk_bf16_f32 v{HR + 8 * bi + i}, v{TMP + 2 * i}, v{TMP + 2 * i + 1}" for i in range(8)]
        if bi < 17:
            P.extend(cvt)
        if bi == 10:
            for m in range(3):
                P(f"v_cvt_pk_bf16_f32 v{32 + m}, v{TL + 2 * m}, v{TL + 2 * m + 1}")
            for m in range(3):
                P(f"v_pk_mul_f32 {p2(TL + 2 * m)}, {p2(TL + 2 * m)}, {p2(TL + 2 * m)}")
            for m in range(3):
                P(f"ds_write_b16 v{vLH}, v{32 + m} offset:{256 * m}")
                P(f"ds_write_b16_d16_hi v{vLH}, v{32 + m} offset:{256 * m + 64}")
            for m in range(3):
                P(f"v_add_f32 v{TL + 2 * m}, v{TL + 2 * m}, v{TL + 2 * m + 1}")
            for m in range(3):
                P(f"v_mov_b32 v{TL + 2 * m + 1}, v{TL + 2 * m}")
            for m in range(3):
                P(f"v_permlane32_swap_b32 v{TL + 2 * m}, v{TL + 2 * m + 1}")
            for m in range(3):
                P(f"v_add_f32 v{TL + 2 * m}, v{TL + 2 * m}, v{TL + 2 * m + 1}")
            for m in range(3):
                for h in range(2):
                    P(f"ds_bpermute_b32 v{38 + 2 * m + h}, v{vBP}, v{TL + 2 * m} offset:{64 * h}")
        if t == 5:
            P.extend(reduce_ss(mt))
            if mt == 1:
                P.extend(publish(0))
            if mt >= 1:
                P.extend(publish(mt))
        if bi == 17:
            stamp()
            stamp("p1")
            P.extend(cvt)
    dump("h", [f"v{HR + i}" for i in range(144)], "v47")

    vO, vSEL, vCNT = 1, 4, 10
    AH, AX, AXL, AB, AHL, AOL = 0, 144, 180, 192, 204, 216
    WP, WF, AC2, SV = 40, 112, 40, 16
    P(f"""
    v_and_b32 v11, 15, v0
    v_lshrrev_b32 v12, 4, v0
    s_mul_i32 s51, {sY0}, 224
    s_add_u32 s51, s51, {sX0}
    s_mul_i32 s51, s51, 192
    s_mov_b32 s52, 83328
    v_lshrrev_b32 v13, 1, v12
    v_and_b32 v14, 1, v12
    v_lshlrev_b32 v14, 2, v14
    v_lshl_add_u32 v13, v13, 4, v14
    v_lshrrev_b32 v14, 2, v11
    v_add_u32 v14, v14, v13
    v_mul_u32_u24 v14, 192, v14
    v_and_b32 v15, 3, v0
    v_lshl_add_u32 v14, v15, 4, v14
    v_add_u32 v14, s50, v14
    """)
    P(f"s_mul_i32 s47, {sW}, 192")
    P("v_lshl_add_u32 v16, v13, 1, s47")
    for j in range(3):
        for h in range(2):
            P(f"buffer_load_dwordx2 {a(AB + 4 * j + 2 * h, 2)}, v16, {B}, 0 offen offset:{64 * j + 16 * h}")
    P.wait_vm("w2")
    fidx = lambda p, j, e: p * 6 + j * 2 + e
    for p in range(3):
        for j in range(3):
            for e in range(2):
                for h in range(2):
                    P(f"ds_read_b64_tr_b16 {v(WP + 4 * fidx(p, j, e) + 2 * h, 2)}, v14 "
                      f"offset:{j * 6144 + h * 1536 + p * 64 + e * 8}")
    for i in range(3):
        P(f"""
        s_mul_i32 s47, {sW}, 3
        s_add_u32 s47, s47, {i}
        s_and_b32 s48, s47, 1
        s_mul_i32 s48, s48, 43008
        s_add_u32 s48, s48, s51
        s_lshr_b32 s47, s47, 1
        s_lshl_b32 s47, s47, 4
        v_add_u32 v15, s47, v11
        v_mul_u32_u24 v16, 4682, v15
        v_lshrrev_b32 v16, 16, v16
        v_mul_u32_u24 v15, 192, v15
        v_mad_u32_u24 v15, v16, s52, v15
        v_lshl_add_u32 v16, v12, 4, s48
        v_add_u32 v{vO + i}, v15, v16
        """)
        for p in range(3):
            P(f"buffer_load_dwordx4 {a(AX + (i * 3 + p) * 4, 4)}, v{vO + i}, {X}, 0 offen offset:{64 * p}")
    P(f"""
    s_add_u32 s53, s51, {(12 * 224 + 12) * 192}
    v_bfe_u32 v15, v0, 1, 1
    v_mul_u32_u24 v15, 43008, v15
    v_and_b32 v16, 1, v0
    v_mul_u32_u24 v16, 192, v16
    v_add3_u32 v15, v15, v16, s53
    v_lshl_add_u32 v15, v12, 4, v15
    v_cmp_gt_u32 vcc, 4, v11
    s_cmp_eq_u32 {sW}, 0
    s_cselect_b64 s[64:65], -1, 0
    s_and_b64 vcc, vcc, s[64:65]
    v_mov_b32 v17, 0
    v_cndmask_b32 v15, v8, v15, vcc
    """)
    for p in range(3):
        P(f"buffer_load_dwordx4 {a(AXL + 4 * p, 4)}, v15, {X}, 0 offen offset:{64 * p}")
    P(f"buffer_load_dword v{vCNT}, v17, {DBG}, 0 offen sc1")
    P(f"""
    v_bfe_u32 v15, v0, 4, 1
    v_lshrrev_b32 v16, 5, v0
    v_lshl_add_u32 v16, v16, 4, v11
    v_lshlrev_b32 v16, 4, v16
    v_lshl_add_u32 v15, v15, 10, v16
    s_mul_i32 s47, {sW}, 12288
    v_add_u32 v15, s47, v15
    v_add_u32 v16, 49152, v15
    v_add_u32 v17, 98304, v15
    s_mul_i32 s47, {sW}, 384
    s_add_u32 s47, s47, {BP}
    v_lshl_add_u32 v18, v12, 4, s47
    """)
    P.wait_lgkm()
    P("s_barrier")
    stamp()
    bias = [f"{MF16} {a(AOL + 4 * (2 * p + e), 4)}, {v(WP + 4 * fidx(p, j, e), 4)}, {a(AB + 4 * j, 4)}, "
            f"{a(AOL + 4 * (2 * p + e), 4) if j else 0}" for j in range(3) for p in range(3) for e in range(2)]
    for bi in range(18):
        mt, t = divmod(bi, 6)
        for c in range(2):
            P(f"ds_write_b128 v{15 + mt}, {v(HR + 8 * bi + 4 * c, 4)} offset:{t * 2048 + c * 512}")
        if bi >= 9:
            P.extend(bias[2 * (bi - 9): 2 * (bi - 9) + 2])
        for i in range(4):
            P(f"v_lshlrev_b32 v{WF + 8 * bi + 2 * i}, 16, v{WP + 4 * bi + i}")
            P(f"v_and_b32 v{WF + 8 * bi + 2 * i + 1}, 0xffff0000, v{WP + 4 * bi + i}")
    P("s_mov_b32 s64, 0x00010001")
    P("s_mov_b32 s65, 0x00010001")
    P("s_mov_b64 exec, s[64:65]")
    for mt in range(6):
        P(f"ds_write_b128 v18, {a(AOL + 4 * mt, 4)} offset:{64 * mt}")
    P("s_mov_b64 exec, -1")
    P(f"""
    v_and_b32 v19, 3, v0
    v_mul_u32_u24 v15, 384, v19
    v_lshl_add_u32 v15, v12, 4, v15
    v_add_u32 v15, {BP}, v15
    v_lshlrev_b32 v14, 6, v19
    v_lshl_add_u32 v14, v12, 4, v14
    s_mul_i32 s47, {sW}, 768
    s_add_u32 s47, s47, {LH}
    v_add_u32 v14, s47, v14
    v_lshrrev_b32 v9, 2, v11
    v_cmp_eq_u32 vcc, v9, v12
    v_and_b32 v9, 1, v0
    v_lshlrev_b32 v9, 4, v9
    v_mov_b32 v{vSEL}, 0x3f80
    v_lshlrev_b32 v9, v9, v{vSEL}
    v_cndmask_b32 v9, 0, v9, vcc
    v_and_b32 v19, 2, v0
    v_cmp_eq_u32 vcc, 0, v19
    v_mov_b32 v{vSEL}, 0
    v_mov_b32 v{vSEL + 1}, 0
    v_cndmask_b32 v{vSEL + 2}, 0, v9, vcc
    v_cndmask_b32 v{vSEL + 3}, v9, 0, vcc
    v_mov_b32 v8, 0
    v_mov_b32 v9, 0
    """)
    P.wait_lgkm()
    P("s_barrier")
    stamp()
    for mt in range(6):
        P(f"ds_read_b128 {v(SV + 4 * mt, 4)}, v15 offset:{64 * mt}")
    for m in range(3):
        P(f"ds_read_b128 {a(AHL + 4 * m, 4)}, v14 offset:{256 * m}")
    hread = []
    for rel in range(4):
        hread += [f"s_add_u32 s47, {sW}, {rel}", "s_and_b32 s47, s47, 3", "s_mul_i32 s47, s47, 12288",
                  f"s_mul_i32 s48, {sW}, 3072", "s_add_u32 s47, s47, s48",
                  f"v_lshl_add_u32 v14, v0, 4, s47", "v_add_u32 v15, 65536, v14"]
        for m in range(3):
            for i in range(3):
                off = m * 49152 + i * 1024
                reg, off = (14, off) if off < 65536 else (15, off - 65536)
                hread.append(f"ds_read_b128 {a(AH + ((rel * 3 + m) * 3 + i) * 4, 4)}, v{reg} offset:{off}")
    dpp = [f"v_add_f32_dpp v{SV + r}, v{SV + r}, v{SV + r} quad_perm:{qp} row_mask:0xf bank_mask:0xf"
           for qp in ("[1,0,3,2]", "[2,3,0,1]") for r in range(24)]
    acc2 = lambda p, i, e: AC2 + (p * 3 + i) * 8 + 4 * e
    init = [f"{MF16} {v(acc2(p, i, e), 4)}, {v(vSEL + 2 - 2 * e, 4)}, {a(AX + (i * 3 + p) * 4, 4)}, "
            f"{v(SV + 4 * (2 * p + e), 4)}" for p in range(3) for i in range(3) for e in range(2)]
    init += [f"{MF16} {a(AOL + 4 * (2 * p + e), 4)}, {v(vSEL + 2 - 2 * e, 4)}, {a(AXL + 4 * p, 4)}, "
             f"{a(AOL + 4 * (2 * p + e), 4)}" for p in range(3) for e in range(2)]
    P.extend(hread[:16])
    P.extend(weave(dpp + init, hread[16:], per=1))
    P.wait_lgkm()
    P("s_barrier")
    stamp()

    P(f"""
    v_mov_b32 v11, 0
    s_mov_b32 s54, 0
    v_readfirstlane_b32 s47, v{vCNT}
    s_cmp_ge_u32 s47, {NWG}
    s_cbranch_scc1 L_CLEARED
    """)
    P.region_begin()
    P("L_CLRPOLL:")
    P(f"buffer_load_dword v{vCNT}, v11, {DBG}, 0 offen sc1")
    P(f"""
    v_readfirstlane_b32 s47, v{vCNT}
    s_add_u32 s54, s54, 1
    s_cmp_ge_u32 s54, 0x200000
    s_cbranch_scc1 L_CLEARED
    s_cmp_lt_u32 s47, {NWG}
    s_cbranch_scc1 L_CLRPOLL
    """)
    P.region_end()
    P("L_CLEARED:")
    P(f"s_cmp_ge_u32 s2, {NRED}")
    P("s_cbranch_scc1 L_NORED")
    P.region_begin()
    P(f"""
    s_lshl_b32 s47, s2, 14
    s_lshl_b32 s48, {sW}, 10
    s_add_u32 s47, s47, s48
    v_lshl_add_u32 v11, v0, 4, s47
    v_and_b32 v12, 15, v0
    s_lshl_b32 s48, s2, 5
    v_lshl_add_u32 v13, v12, 1, s48
    s_movk_i32 s55, 0x1000
    s_movk_i32 s56, 0x2000
    s_movk_i32 s57, 0x3000
    """)
    P(f"buffer_load_ushort v32, v13, {G}, 0 offen")
    P("L_H1POLL:")
    for k, so in enumerate(("0", "s55", "s56", "s57")):
        P(f"buffer_load_dwordx4 {v(16 + 4 * k, 4)}, v11, {WS}, {so} offen sc1")
    P("v_or_b32 v13, v16, v17")
    for k in range(18, 32, 2):
        P(f"v_or3_b32 v13, v13, v{k}, v{k + 1}")
    P(f"""
    v_cmp_gt_i32 vcc, 0, v13
    s_add_u32 s54, s54, 1
    s_cmp_ge_u32 s54, 0x200000
    s_cbranch_scc1 L_H1DONE
    s_cbranch_vccnz L_H1POLL
    L_H1DONE:
    v_pk_add_f32 v[16:17], v[16:17], v[20:21]
    v_pk_add_f32 v[18:19], v[18:19], v[22:23]
    v_pk_add_f32 v[24:25], v[24:25], v[28:29]
    v_pk_add_f32 v[26:27], v[26:27], v[30:31]
    v_pk_add_f32 v[16:17], v[16:17], v[24:25]
    v_pk_add_f32 v[18:19], v[18:19], v[26:27]
    """)
    for ror in (4, 8):
        for r in range(16, 20):
            P(f"v_add_f32_dpp v{r}, v{r}, v{r} row_ror:{ror} row_mask:0xf bank_mask:0xf")
    P(f"""
    v_permlane16_swap_b32 v16, v17
    v_permlane16_swap_b32 v18, v19
    v_and_b32 v13, 3, v0
    v_lshrrev_b32 v14, 4, v0
    v_add_f32 v16, v16, v17
    v_add_f32 v18, v18, v19
    v_lshl_add_u32 v13, v13, 2, v14
    s_lshl_b32 s47, {sW}, 2
    s_add_u32 s47, s47, {RS}
    v_permlane32_swap_b32 v16, v18
    v_lshl_add_u32 v13, v13, 4, s47
    v_add_f32 v16, v16, v18
    ds_write_b32 v13, v16
    v_lshlrev_b32 v13, 4, v12
    v_add_u32 v13, {RS}, v13
    """)
    P.wait_lgkm()
    P("s_barrier")
    P(f"""
    ds_read_b128 v[16:19], v13
    v_lshrrev_b32 v15, 1, v14
    s_lshl_b32 s47, {sW}, 1
    v_add_u32 v15, s47, v15
    v_and_b32 v14, 1, v14
    v_cmp_eq_u32 vcc, 1, v14
    v_mul_u32_u24 v14, 1536, v14
    v_lshl_add_u32 v14, v15, 12, v14
    v_lshl_add_u32 v14, v12, 2, v14
    s_lshl_b32 s47, s2, 6
    s_add_u32 s47, s47, {H2}
    v_lshlrev_b32 v32, 16, v32
    v_mov_b32 v20, {f32(1e-6)}
    v_pk_add_f32 v[16:17], v[16:17], v[18:19]
    v_add_f32 v16, v16, v17
    v_fmac_f32 v20, {f32(KAP * KAP)}, v16
    v_sqrt_f32 v20, v20
    v_mul_f32 v21, v32, v20
    v_cndmask_b32 v20, v20, v21, vcc
    """)
    P(f"buffer_store_dword v20, v14, {WS}, s47 offen sc1")
    P.region_end()
    P("L_NORED:")
    stamp()
    P(f"""
    s_and_b32 s47, s2, {NREP - 1}
    s_lshl_b32 s47, s47, 12
    s_add_u32 s47, s47, {H2}
    v_lshl_add_u32 v10, v0, 4, s47
    v_lshl_add_u32 v11, v0, 3, s47
    v_lshrrev_b32 v12, 5, v0
    v_bfe_u32 v13, v0, 4, 1
    v_lshlrev_b32 v13, 4, v13
    v_lshl_add_u32 v12, v12, 6, v13
    s_mul_i32 s48, {sW}, 384
    s_add_u32 s47, s47, s48
    s_add_u32 s47, s47, 1536
    v_add_u32 v13, s47, v12
    s_mul_i32 s47, {sW}, 6144
    v_lshl_add_u32 v12, v0, 4, s47
    s_mov_b32 s62, {f32(KAP)}
    s_mov_b32 s63, {f32(KAP)}
    """)
    P.wait_vm_all()
    P("L_H2POLL:")
    P(f"buffer_load_dwordx4 v[4:7], v10, {WS}, 0 offen sc1")
    P(f"buffer_load_dwordx2 v[8:9], v11, {WS}, 0 offen offset:1024 sc1")
    for j in range(3):
        for h in range(2):
            P(f"buffer_load_dwordx4 {v(SV + 8 * j + 4 * h, 4)}, v13, {WS}, 0 offen offset:{128 * j + 32 * h} sc1")
    P("v_max3_u32 v14, v4, v5, v6")
    P("v_max3_u32 v15, v7, v8, v9")
    for k in range(12):
        r = 14 + k % 2
        P(f"v_max3_u32 v{r}, v{r}, v{SV + 2 * k}, v{SV + 2 * k + 1}")
    P(f"""
    v_max_u32 v14, v14, v15
    v_cmp_eq_u32 vcc, -1, v14
    s_add_u32 s54, s54, 1
    s_cmp_ge_u32 s54, 0x200000
    s_cbranch_scc1 L_H2DONE
    s_cbranch_vccz L_H2DONE
    s_sleep 1
    s_branch L_H2POLL
    L_H2DONE:
    """)
    stamp()
    stamp("p2")
    P(f"""
    v_pk_add_f32 v[4:5], v[4:5], v[6:7]
    v_pk_add_f32 v[4:5], v[4:5], v[8:9]
    v_add_f32 v4, v4, v5
    """)
    for ror in (1, 2, 4, 8):
        P(f"v_add_f32_dpp v4, v4, v4 row_ror:{ror} row_mask:0xf bank_mask:0xf")
    P(f"""
    v_mov_b32 v5, v4
    v_permlane16_swap_b32 v4, v5
    v_add_f32 v4, v4, v5
    v_mov_b32 v5, v4
    v_permlane32_swap_b32 v4, v5
    v_mov_b32 v6, {f32(1e-6)}
    v_add_f32 v4, v4, v5
    v_fmac_f32 v6, {f32(1 / 384)}, v4
    v_rcp_f32 v6, v6
    v_mul_f32 v6, {f32(KAP)}, v6
    """)
    for k in range(12):
        P(f"v_pk_fma_f32 {v(SV + 2 * k, 2)}, {v(SV + 2 * k, 2)}, v[6:7], s[62:63] op_sel_hi:[1,0,1]")
    dump("s", [f"v{SV + i}" for i in range(24)], "v7")

    RING, NRING = 144, 15

    def scale(p, packed):
        o = []
        for j in range(3):
            for e in range(2):
                b0 = WF + 8 * fidx(p, j, e)
                for i in range(4):
                    if packed:
                        o.append(f"v_pk_mul_f32 {v(b0 + 2 * i, 2)}, {v(b0 + 2 * i, 2)}, {v(SV + 8 * j + 2 * i, 2)}")
                    else:
                        for h in range(2):
                            o.append(f"v_mul_f32 v{b0 + 2 * i + h}, v{b0 + 2 * i + h}, v{SV + 8 * j + 2 * i + h}")
                for i in range(4):
                    o.append(f"v_cvt_pk_bf16_f32 v{b0 + i}, v{b0 + 2 * i}, v{b0 + 2 * i + 1}")
                o.append(f"ds_write_b128 v12, {v(b0, 4)} offset:{p * 24576 + (2 * j + e) * 1024}")
        return o

    def epilogue(p):
        o = []
        for i in range(3):
            b0 = acc2(p, i, 0)
            for k in range(4):
                o.append(f"v_cvt_pk_bf16_f32 v{b0 + k}, v{b0 + 2 * k}, v{b0 + 2 * k + 1}")
            o.append(f"buffer_store_dwordx4 {v(b0, 4)}, v{vO + i}, {OUT}, 0 offen offset:{64 * p}{opt['st']}")
        return o

    stamp("p2")
    P.extend(scale(0, True))
    stamp("p2")
    ring = 0
    for p in range(3):
        mm, reads = [], []
        for j in range(3):
            for e in range(2):
                A = v(WF + 8 * fidx(p, j, e), 4)
                for i in range(3):
                    d = v(acc2(p, i, e), 4)
                    mm.append(f"{MF16} {d}, {A}, {a(AH + (j * 3 + i) * 4, 4)}, {d}")
                d = a(AOL + 4 * (2 * p + e), 4)
                mm.append(f"{MF16} {d}, {A}, {a(AHL + 4 * j, 4)}, {d}")
        for rel in range(1, 4):
            for j in range(3):
                for e in range(2):
                    slot = RING + 4 * (ring % NRING)
                    k = len(reads)
                    reads.append(f"ds_read_b128 {a(slot, 4)}, v{12 + rel} offset:{p * 24576 + (2 * j + e) * 1024}")
                    ring += 1
                    for i in range(3):
                        d = v(acc2(p, i, e), 4)
                        mm.append(f"{MF16} {d}, {a(slot, 4)}, {a(AH + ((rel * 3 + j) * 3 + i) * 4, 4)}, {d}")
        fill = []
        if p == 0:
            for rel in range(1, 4):
                fill += [f"s_add_u32 s47, {sW}, {rel}", "s_and_b32 s47, s47, 3", "s_mul_i32 s47, s47, 6144",
                         f"v_lshl_add_u32 v{12 + rel}, v0, 4, s47"]
        fill += [("wait_lgkm", None), "s_barrier"] + reads[:12]
        if p > 0:
            fill += epilogue(p - 1)
        rest = scale(p + 1, False) if p < 2 else []
        if p == 2:
            rest = [f"v_and_b32 v4, 15, v0", "v_lshrrev_b32 v5, 4, v0", "v_mul_u32_u24 v4, 384, v4",
                    "v_lshl_add_u32 v4, v5, 5, v4", f"s_mul_i32 s47, {sW}, 1536", f"s_add_u32 s47, s47, {LO}",
                    "v_add_u32 v4, s47, v4", "s_mov_b32 s64, 0x000f000f", "s_mov_b32 s65, 0x000f000f",
                    ("at", 27)]
            rest.append("\n".join(["s_mov_b64 exec, s[64:65]"] + [
                f"ds_write_b128 v4, {a(AOL + 4 * mt, 4)} offset:{(mt // 2) * 128 + (mt % 2) * 16}"
                for mt in range(6)] + ["s_mov_b64 exec, -1"]))
            rest += ["v_mul_u32_u24 v5, 5462, v0", "v_lshrrev_b32 v5, 16, v5",
                     "v_mad_i32_i24 v6, v5, -12, v0", "v_lshrrev_b32 v7, 1, v5", "v_mul_u32_u24 v7, 43008, v7",
                     "v_and_b32 v5, 1, v5", "v_mul_u32_u24 v5, 192, v5", "v_add3_u32 v5, v5, v7, s53",
                     "v_lshl_add_u32 v5, v6, 4, v5", "v_cmp_gt_u32 vcc, 48, v0", f"s_cmp_eq_u32 {sW}, 0",
                     "s_cselect_b64 s[64:65], -1, 0", "s_and_b64 vcc, vcc, s[64:65]", f"v_mov_b32 v6, {OOB}",
                     "v_min_u32 v7, 47, v0", "v_cndmask_b32 v5, v6, v5, vcc", "v_lshlrev_b32 v7, 5, v7",
                     f"v_add_u32 v7, {LO}, v7"]
        for k in range(12, 18):
            fill += rest[: len(rest) // (19 - k)]
            rest = rest[len(rest) // (19 - k):]
            fill += [("at", 24 + 3 * max(0, k - NRING + 1) if k >= NRING else 0), reads[k]]
        fill += rest
        if p == 2:
            fill += [("wait_lgkm", None), "s_barrier"]
            for w_ in range(4):
                for e in range(2):
                    fill.append(f"ds_read_b128 {v(40 + 8 * w_ + 4 * e if w_ < 3 else 16 + 4 * e, 4)}, v7 "
                                f"offset:{w_ * 1536 + 16 * e}")
            for k in range(8):
                fill.append(f"v_add_f32 v{40 + k}, v{40 + k}, v{48 + k}")
                fill.append(f"v_add_f32 v{16 + k}, v{16 + k}, v{56 + k}")
            for k in range(8):
                fill.append(f"v_add_f32 v{40 + k}, v{40 + k}, v{16 + k}")
            for k in range(4):
                fill.append(f"v_cvt_pk_bf16_f32 v{40 + k}, v{40 + 2 * k}, v{41 + 2 * k}")
            fill.append(f"buffer_store_dwordx4 v[40:43], v5, {OUT}, 0 offen{opt['st']}")
        seq = weave(mm, fill, per=2)
        for k, rd_ in enumerate(reads):
            assert seq.index(rd_) < seq.index(mm[24 + 3 * k]), (p, k)
            if k >= NRING:
                assert seq.index(rd_) > seq.index(mm[24 + 3 * (k - NRING) + 2]), (p, k)
        for part in (seq[:seq.index(mm[24])], seq[seq.index(mm[24]):seq.index(mm[51])], seq[seq.index(mm[51]):]):
            P.extend(part)
            stamp("p2")
    P.extend(epilogue(2))
    stamp()
    stamp("p2")
    if opt.get("dbgtime"):
        P.wait_vm_all()
        P("""
        s_memrealtime s[92:93]
        s_memtime s[94:95]
        s_waitcnt lgkmcnt(0)
        s_sub_u32 s94, s94, s98
        s_sub_u32 s95, s92, s96
        s_not_b32 s96, s96
        v_mov_b32 v4, s92
        v_mov_b32 v5, s96
        v_mov_b32 v6, s94
        v_mov_b32 v7, s95
        v_mov_b32 v8, 0
        s_mov_b64 exec, 1
        """)
        for k in range(4):
            P(f"buffer_atomic_umax v{4 + k}, v8, {DBG}, 0 offen offset:{4 + 4 * k}")
        P("s_mov_b64 exec, -1")
    if opt["stamps"]:
        P.wait_vm_all()
        stamp()
        P.wait_lgkm()
        P(f"s_lshl_b32 s47, s2, 2")
        P(f"s_add_u32 s47, s47, {sW}")
        P(f"s_lshl_b32 s47, s47, 6")
        P(f"s_add_u32 s47, s47, {DIAG}")
        P("v_mov_b32 v4, 0")
        for k in range(nstamp[0]):
            P(f"v_mov_b32 v5, s{72 + 2 * k}")
            P(f"buffer_store_dword v5, v4, {WS}, s47 offen offset:{4 * k}")
    P("L_END:")
    P("s_endpgm")
    P("L_CODE_END:")
    body = P.render()
    head = open(f"cdna_kernels/{NAME}.s.ref").read().split("\n")
    head = [x for x in head[: next(i for i, y in enumerate(head) if "@launch" in y)]]
    text = "\n".join(head) + f"""
; @launch grid=({NWG},1,1) block=(256,1,1) lds={LDS_BYTES}
.amdgcn_target "amdgcn-amd-amdhsa--gfx950"
.text
.globl {NAME}_kernel
.p2align 8
.type {NAME}_kernel,@function
{NAME}_kernel:
{body}.section .rodata,"a"
.p2align 6
.amdhsa_kernel {NAME}_kernel
  .amdhsa_next_free_vgpr 512
  .amdhsa_next_free_sgpr 102
  .amdhsa_accum_offset 256
  .amdhsa_group_segment_fixed_size 0
  .amdhsa_kernarg_size 72
  .amdhsa_user_sgpr_count 2
  .amdhsa_user_sgpr_kernarg_segment_ptr 1
  .amdhsa_system_sgpr_workgroup_id_x 1
  .amdhsa_float_denorm_mode_32 3
.end_amdhsa_kernel
"""
    return text, P


if __name__ == "__main__":
    out = sys.argv[1] if len(sys.argv) > 1 else f"cdna_kernels/{NAME}.s"
    opt = eval(sys.argv[2]) if len(sys.argv) > 2 else {}
    text, P = generate(opt)
    open(out, "w").write(text)
    n = sum(1 for x in P.final if x.kind != "meta")
    print(f"{out}: {n} instructions, {P.pads} padded wait states")
```

```python
import math
import struct
import sys

from asmlib import Prog, weave

NAME = "standalone__modern_conv_block_slak__vision"
NWG = 256
NRED = 24
NREP = 8
OOB = 0x80000000

WS_, WSL = 0, 18432
XP, XPAIR, XROW, XPX = 73728, 6752, 3328, 208
LN0 = 127744
DWC = 152320
LH, BP, LO, RS = 152320, 155392, 156928, 163072
LDS_BYTES = 163840
H1, H1P = 0, 16384
H2 = NRED * H1P
WS_BYTES = H2 + NREP * 4096
DIAG = 1 << 20

C0 = 2 * math.log2(math.e) * math.sqrt(2 / math.pi)
KAP = (C0 * 0.044715) ** (-1 / 3)
KC = -C0 * KAP


def f32(x):
    return "0x%08x" % struct.unpack("<I", struct.pack("<f", x))[0]


def v(a, n=1):
    return f"v{a}" if n == 1 else f"v[{a}:{a + n - 1}]"


def a(x, n=1):
    return f"a{x}" if n == 1 else f"a[{x}:{x + n - 1}]"


X, DW, W1, W2, G, B, OUT, DBG, WS = ("s[4:7]", "s[12:15]", "s[16:19]", "s[20:23]", "s[24:27]",
                                     "s[28:31]", "s[32:35]", "s[36:39]", "s[40:43]")
sW, sY0, sX0 = "s44", "s45", "s46"
MF16, MF32 = "v_mfma_f32_16x16x32_bf16", "v_mfma_f32_32x32x16_bf16"


def generate(opt=None):
    opt = dict(stamps=False, dump=None, st="", prefetch=True) | (opt or {})
    P = Prog()
    nstamp = [0]

    def stamp(name=None):
        if opt["stamps"] and (name == "first" or name == opt.get("fine")):
            k = nstamp[0]
            P(f"{'s_memtime' if opt['stamps'] == 'cyc' else 's_memrealtime'} s[{72 + 2 * k}:{73 + 2 * k}]")
            nstamp[0] += 1

    def dump(name, regs, tmp):
        if opt["dump"] != name:
            return
        P(f"s_mul_i32 s3, s2, {len(regs) * 1024}")
        P(f"s_lshl_b32 s47, {sW}, 8")
        P(f"s_add_u32 s3, s3, s47")
        P(f"s_add_u32 s3, s3, {DIAG + 65536}")
        P(f"v_mbcnt_lo_u32_b32 {tmp}, -1, 0")
        P(f"v_mbcnt_hi_u32_b32 {tmp}, -1, {tmp}")
        P(f"v_lshlrev_b32 {tmp}, 2, {tmp}")
        for r in regs:
            P(f"buffer_store_dword {r}, {tmp}, {WS}, s3 offen")
            P("s_add_u32 s3, s3, 1024")
        P.wait_vm_all()

    P(f"s_cmp_ge_u32 s2, {NWG}")
    P("s_cbranch_scc1 L_END")
    stamp("first")
    if opt.get("dbgtime"):
        P("s_memrealtime s[96:97]")
        P("s_memtime s[98:99]")
    for srd, off in ((4, 0), (12, 8), (16, 16), (40, 64), (36, 56), (20, 24), (24, 32), (28, 40), (32, 48)):
        P(f"s_load_dwordx2 s[{srd}:{srd + 1}], s[0:1], {off}")
    if opt["prefetch"]:
        P("s_getpc_b64 s[66:67]")
        P("L_PC:")
        P("v_lshlrev_b32 v1, 7, v0")
        P("v_min_u32 v1, L_CODE_END-L_PC-4, v1")
        P("global_load_dword v2, v1, s[66:67]")
    P(f"""
    v_lshrrev_b32 v3, 6, v0
    v_and_b32 v0, 63, v0
    v_readfirstlane_b32 {sW}, v3
    s_and_b32 s47, s2, 7
    s_lshr_b32 s48, s2, 3
    s_lshr_b32 s49, s47, 1
    s_lshl_b32 s49, s49, 2
    s_lshr_b32 s50, s48, 3
    s_add_u32 s49, s49, s50
    s_mul_i32 {sY0}, s49, 14
    s_and_b32 s47, s47, 1
    s_lshl_b32 s47, s47, 3
    s_and_b32 s48, s48, 7
    s_add_u32 s47, s47, s48
    s_mul_i32 {sX0}, s47, 14
    s_sub_u32 s47, {sX0}, 1
    s_mul_i32 s48, s47, 192
    s_movk_i32 s49, 224
    v_mov_b32 v8, {OOB}
    """)
    for i in range(4):
        P(f"""
        v_add_u32 v9, {64 * i}, v0
        v_mul_u32_u24 v10, 5042, v9
        v_lshrrev_b32 v10, 16, v10
        v_mad_i32_i24 v11, v10, -13, v9
        v_add_u32 v12, s47, v10
        v_sub_u32 v9, v9, v10
        v_cmp_gt_u32 vcc, 12, v11
        v_cmp_gt_u32 s[64:65], s49, v12
        v_lshl_add_u32 v9, v9, 4, s48
        s_and_b64 vcc, vcc, s[64:65]
        v_cndmask_b32 v{4 + i}, v8, v9, vcc
        """)
    diag = opt["stamps"] or opt["dump"]
    for srd, size in ((4, 9633792), (12, 1728), (16, 73728), (20, 73728), (24, 768), (28, 768),
                      (32, 9633792), (36, 256), (40, (64 << 20) if diag else WS_BYTES)):
        P(f"s_mov_b32 s{srd + 2}, {size}")
        P(f"s_mov_b32 s{srd + 3}, 0x20000")
    P(f"""
    v_lshlrev_b32 v9, 4, v0
    s_lshl_b32 s47, {sW}, 11
    s_add_u32 m0, s47, {DWC}
    """)
    stamp("p0")
    P(f"buffer_load_dwordx4 v9, {DW}, 0 offen lds", "dw")
    P(f"buffer_load_dwordx4 v9, {DW}, 0 offen offset:1024 lds", "dw")

    def xrow(k):
        P(f"""
        s_add_u32 s47, {sW}, {4 * k}
        s_add_u32 s48, s47, {sY0}
        s_sub_u32 s48, s48, 1
        s_cmp_lt_u32 s48, 224
        s_cselect_b32 s6, 9633792, 0
        s_cselect_b32 s48, s48, 0
        s_mul_i32 s48, s48, 43008
        s_lshr_b32 s49, s47, 1
        s_mul_i32 s49, s49, {XPAIR}
        s_and_b32 s47, s47, 1
        s_mul_i32 s47, s47, {XROW}
        s_add_u32 s47, s47, s49
        s_add_u32 m0, s47, {XP}
        """)
        for i in range(4):
            if i == 3:
                P("s_mov_b64 exec, 0xffff")
            P(f"buffer_load_dwordx4 v{4 + i}, {X}, s48 offen lds", f"x{k}")
            if i < 3:
                P("s_add_u32 m0, m0, 1024")
        P("s_mov_b64 exec, -1")

    for k in range(3):
        xrow(k)
    stamp("p0")
    xrow(3)
    stamp("p0")
    P("s_mov_b32 s6, 9633792")
    P(f"s_mul_i32 s47, {sW}, 192")
    for i in range(3):
        P(f"""
        v_add_u32 v10, {64 * i}, v0
        v_mul_u32_u24 v11, 5462, v10
        v_lshrrev_b32 v11, 16, v11
        v_mul_u32_u24 v11, 576, v11
        v_lshl_add_u32 v10, v10, 4, s47
        v_add_u32 v{4 + i}, v10, v11
        """)
    P(f"s_mul_i32 s50, {sW}, {WSL}")
    P("s_mov_b32 m0, s50")
    for blk in range(6):
        P(f"s_mov_b32 s48, {blk * 12288}")
        for i in range(3):
            P(f"buffer_load_dwordx4 v{4 + i}, {W1}, s48 offen lds", "w1")
            if blk * 3 + i < 17:
                P("s_add_u32 m0, m0, 1024")
    P(f"""
    v_mov_b32 v20, -1
    v_mov_b32 v21, -1
    v_mov_b32 v22, -1
    v_mov_b32 v23, -1
    s_mul_i32 s47, {sW}, {6 * H1P}
    s_lshl_b32 s48, s2, 6
    s_add_u32 s47, s47, s48
    v_lshrrev_b32 v10, 2, v0
    v_and_b32 v11, 3, v0
    v_lshlrev_b32 v11, 4, v11
    v_lshl_add_u32 v12, v10, 14, v11
    v_add_u32 v12, s47, v12
    v_cmp_gt_u32 vcc, 24, v0
    s_add_u32 s48, s48, {H2}
    v_lshrrev_b32 v13, 3, v0
    v_cndmask_b32 v12, v8, v12, vcc
    v_and_b32 v10, 1, v10
    v_mul_u32_u24 v10, 1536, v10
    v_lshl_add_u32 v13, v13, 12, v11
    v_add3_u32 v13, v13, v10, s48
    s_cmp_lt_u32 s2, {NRED}
    s_cselect_b64 s[64:65], -1, 0
    s_cmp_eq_u32 {sW}, 0
    s_cselect_b64 vcc, s[64:65], 0
    v_cndmask_b32 v13, v8, v13, vcc
    """)
    P(f"buffer_store_dwordx4 v[20:23], v12, {WS}, 0 offen sc1", "clr")
    P(f"buffer_store_dwordx4 v[20:23], v13, {WS}, 0 offen sc1", "clr")
    stamp()
    stamp("p0")

    vN, vG, vM0, vDW, vB1, vB2, vL1, vL2, vW1, vR0, vR1 = 1, 2, 4, 12, 13, 14, 15, 16, 17, 18, 19
    P(f"""
    v_and_b32 v{vN}, 15, v0
    v_lshrrev_b32 v{vG}, 4, v0
    v_lshrrev_b32 v9, 3, v{vN}
    v_sub_u32 v9, v{vG}, v9
    v_cmp_gt_u32 vcc, 3, v9
    v_and_b32 v10, 1, v0
    v_lshlrev_b32 v10, 4, v10
    v_mov_b32 v11, 0xffff
    v_lshlrev_b32 v10, v10, v11
    v_cndmask_b32 v10, 0, v10, vcc
    v_cndmask_b32 v9, 0, v9, vcc
    v_mul_u32_u24 v9, 576, v9
    s_lshl_b32 s47, {sW}, 11
    s_add_u32 s47, s47, {DWC}
    v_add_u32 v{vDW}, s47, v9
    v_bfe_u32 v11, v0, 1, 2
    """)
    for i in range(4):
        P(f"v_cmp_eq_u32 vcc, {i}, v11")
        P(f"v_cndmask_b32 v{vM0 + i}, 0, v10, vcc")
    P(f"""
    v_lshrrev_b32 v20, 1, v{vG}
    v_and_b32 v21, 1, v{vG}
    v_mul_u32_u24 v22, {XPAIR}, v20
    v_mul_u32_u24 v23, {XROW}, v21
    v_add_u32 v22, v22, v23
    v_add_u32 v22, {XP}, v22
    """)
    for dst, t0 in ((vB1, 0), (vB2, 4)):
        P(f"""
        s_add_u32 s47, {sW}, {t0}
        s_lshl_b32 s47, s47, 4
        v_add_u32 v9, s47, v{vN}
        v_min_u32 v9, 97, v9
        v_mul_u32_u24 v10, 4682, v9
        v_lshrrev_b32 v10, 16, v10
        v_mul_u32_u24 v9, {XPX}, v9
        v_mul_u32_u24 v10, {XPAIR - 14 * XPX}, v10
        v_add3_u32 v{dst}, v9, v10, v22
        """)
    P(f"""
    v_lshl_add_u32 v9, v20, 4, v{vN}
    v_lshl_add_u32 v10, v20, 2, v{vN}
    v_add_u32 v11, 8, v{vN}
    v_cmp_gt_u32 vcc, 2, v{vN}
    s_cmp_eq_u32 {sW}, 2
    s_cselect_b64 s[64:65], -1, 0
    v_cndmask_b32 v10, v11, v10, vcc
    v_cndmask_b32 v10, v9, v10, s[64:65]
    v_lshlrev_b32 v21, 9, v21
    s_mul_i32 s47, {sW}, 6144
    s_add_u32 s48, s47, {LN0}
    s_add_u32 s49, s47, {XP}
    v_lshl_add_u32 v9, v9, 4, v21
    v_lshl_add_u32 v10, v10, 4, v21
    v_add_u32 v{vL1}, s48, v9
    v_add_u32 v{vL2}, s49, v10
    v_lshrrev_b32 v9, 2, v{vN}
    v_lshl_add_u32 v9, v20, 2, v9
    v_mul_u32_u24 v9, 192, v9
    v_and_b32 v10, 3, v0
    v_lshlrev_b32 v10, 3, v10
    v_bfe_u32 v11, v0, 4, 1
    v_lshl_add_u32 v10, v11, 5, v10
    v_add3_u32 v{vW1}, v9, v10, s50
    v_lshlrev_b32 v9, 4, v0
    v_add_u32 v{vR0}, {LN0}, v9
    v_add_u32 v{vR1}, {XP}, v9
    s_mov_b32 s60, {f32(KC)}
    s_mov_b32 s61, {f32(KC)}
    """)
    CA, CD = 112, 64
    P.wait_vm("dw")
    stamp("p0")
    rd = [f"ds_read_b128 {v(CA + 4 * f, 4)}, v{vDW} offset:{16 * f}" for f in range(36)]
    for f in range(8):
        P(rd[f])
    for f in range(36):
        if f + 8 < 36:
            P(rd[f + 8])
        for i in range(4):
            P(f"v_and_b32 v{CA + 4 * f + i}, v{vM0 + i}, v{CA + 4 * f + i}")
    stamp("p0")
    P.wait_vm("x2")
    P("s_barrier")
    stamp()
    stamp("p0")

    def conv_ln(vB, vL):
        rds = [f"ds_read_b128 {a(4 * (cg * 3 + dx), 4)}, v{vB} offset:{dx * XPX + cg * 16}"
               for cg in range(12) for dx in range(3)]
        for k in range(8):
            P(rds[k])
        for k in range(36):
            cg, dx = divmod(k, 3)
            if k + 8 < 36:
                P(rds[k + 8])
            d = v(CD + 4 * cg, 4)
            P(f"{MF16} {d}, {v(CA + 4 * (dx * 12 + cg), 4)}, {a(4 * k, 4)}, {d if dx else 0}")
        stamp("p0")
        pr = lambda i: v(CD + 2 * i, 2)
        P(f"v_pk_add_f32 v[20:21], {pr(0)}, {pr(1)}")
        P(f"v_pk_mul_f32 v[22:23], {pr(0)}, {pr(0)}")
        P(f"v_pk_add_f32 v[24:25], {pr(2)}, {pr(3)}")
        P(f"v_pk_mul_f32 v[26:27], {pr(1)}, {pr(1)}")
        for i in range(2, 24):
            if i >= 4:
                s = "v[20:21]" if i % 2 == 0 else "v[24:25]"
                P(f"v_pk_add_f32 {s}, {s}, {pr(i)}")
            q = "v[22:23]" if i % 2 == 0 else "v[26:27]"
            P(f"v_pk_fma_f32 {q}, {pr(i)}, {pr(i)}, {q}")
        P(f"""
        v_pk_add_f32 v[20:21], v[20:21], v[24:25]
        v_pk_add_f32 v[22:23], v[22:23], v[26:27]
        v_add_f32 v20, v20, v21
        v_add_f32 v22, v22, v23
        v_permlane16_swap_b32 v20, v22
        v_add_f32 v20, v20, v22
        v_mov_b32 v22, v20
        v_permlane16_swap_b32 v20, v22
        v_mul_f32 v20, {f32(1 / 96)}, v20
        v_mul_f32 v22, {f32(1 / 96)}, v22
        v_fma_f32 v22, -v20, v20, v22
        v_max_f32 v22, 0, v22
        v_add_f32 v22, {f32(1e-5)}, v22
        v_rsq_f32 v22, v22
        v_mul_f32 v22, {f32(1 / KAP)}, v22
        v_mul_f32 v23, -v20, v22
        """)
        for s in range(6):
            for i in range(4):
                r = pr(4 * s + i)
                P(f"v_pk_fma_f32 {r}, {r}, v[22:23], v[22:23] op_sel:[0,0,1] op_sel_hi:[1,0,1]")
            for i in range(4):
                P(f"v_cvt_pk_bf16_f32 v{CD + 8 * s + i}, v{CD + 8 * s + 2 * i}, v{CD + 8 * s + 2 * i + 1}")
            P(f"ds_write_b128 v{vL}, {v(CD + 8 * s, 4)} offset:{1024 * s}")

    conv_ln(vB1, vL1)
    stamp("p0")
    P.wait_vm("x3")
    P.wait_lgkm()
    P("s_barrier")
    stamp()
    stamp("p0")
    P(f"s_cmp_eq_u32 {sW}, 3")
    P("s_cbranch_scc1 L_NOCONV2")
    P.region_begin()
    conv_ln(vB2, vL2)
    P.region_end()
    P("L_NOCONV2:")
    stamp("p0")
    AW1, ALN, ALL = 144, 0, 216
    P.wait_vm("clr")
    for mt in range(3):
        for s in range(6):
            for e in range(2):
                P(f"ds_read_b64_tr_b16 {a(AW1 + (mt * 6 + s) * 4 + 2 * e, 2)}, v{vW1} "
                  f"offset:{s * 3072 + e * 1536 + mt * 64}")
    P.wait_lgkm()
    P("s_barrier")
    stamp()
    stamp("p0")
    P(f"""
    v_cmp_eq_u32 vcc, 0, v0
    s_cmp_eq_u32 {sW}, 0
    s_cselect_b64 s[64:65], -1, 0
    s_and_b64 vcc, vcc, s[64:65]
    v_mov_b32 v9, 1
    v_cndmask_b32 v10, v8, 0, vcc
    """)
    P(f"buffer_atomic_add v9, v10, {DBG}, 0 offen")

    SS, ACC, TMP, HR = 48, (64, 80), 96, 112
    RED, TL, vPUB, vBP, vLH = 20, 26, 44, 45, 46
    DL = HR + 96

    def ln_read(t, s):
        base, off = (vR0, t * 6144) if t < 4 else (vR1, (t - 4) * 6144)
        dst = ALN + (t * 6 + s) * 4 if t < 6 else ALL + 4 * s
        return f"ds_read_b128 {a(dst, 4)}, v{base} offset:{off + 1024 * s}"

    def mm1(bi):
        mt, t = divmod(bi, 6)
        d = v(ACC[bi % 2], 16)
        return [f"{MF32} {d}, {a(AW1 + (mt * 6 + s) * 4, 4)}, {a(ALN + (t * 6 + s) * 4, 4)}, {d if s else 0}"
                for s in range(6)]

    left = [f"{MF32} {v(DL + 16 * m, 16)}, {a(ALL + 4 * s, 4)}, {a(AW1 + (m * 6 + s) * 4, 4)}, "
            f"{v(DL + 16 * m, 16) if s else 0}" for m in range(3) for s in range(6)]

    stamp("p1")
    for s in range(6):
        P(ln_read(0, s))
    fill = [ln_read(t, s) for t in (1, 6, 2, 3, 4, 5) for s in range(6)]
    P.extend(weave(mm1(0), fill, per=6))
    P(f"""
    v_bfe_u32 v9, v0, 4, 1
    v_lshrrev_b32 v10, 5, v0
    v_bfe_u32 v11, v0, 2, 1
    v_bfe_u32 v12, v0, 3, 1
    v_lshlrev_b32 v13, 3, v9
    v_lshl_add_u32 v13, v10, 2, v13
    v_lshl_add_u32 v13, v11, 1, v13
    v_add_u32 v13, v13, v12
    v_lshlrev_b32 v{vBP}, 2, v13
    s_mul_i32 s47, {sW}, {6 * H1P}
    s_lshl_b32 s48, s2, 6
    s_add_u32 s47, s47, s48
    v_and_b32 v14, 3, v0
    v_cmp_eq_u32 vcc, 0, v14
    v_add_u32 v13, s47, v{vBP}
    v_lshl_add_u32 v15, v9, 1, v11
    v_cndmask_b32 v{vPUB}, v8, v13, vcc
    v_lshl_add_u32 v14, v12, 2, v14
    v_lshlrev_b32 v14, 1, v14
    v_lshl_add_u32 v14, v15, 4, v14
    v_lshl_add_u32 v14, v10, 7, v14
    s_mul_i32 s47, {sW}, 768
    s_add_u32 s47, s47, {LH}
    v_add_u32 v{vLH}, s47, v14
    v_lshlrev_b32 v9, 4, v0
    v_add_u32 v9, s50, v9
    """)
    for k in range(18):
        if k % 4 == 0:
            P(f"s_add_u32 m0, s50, {k * 1024}")
            P(f"s_mov_b32 s48, {k * 1024}")
        P(f"buffer_load_dwordx4 v9, {W2}, s48 offen offset:{(k % 4) * 1024} lds", "w2")

    def reduce_ss(mt):
        o = []
        for r in range(0, 16, 2):
            o.append(f"v_add_f32_dpp v{SS + r}, v{SS + r}, v{SS + r} row_ror:8 row_mask:0xf bank_mask:0x3")
        for r in range(0, 16, 2):
            o.append(f"v_add_f32_dpp v{SS + r}, v{SS + r + 1}, v{SS + r + 1} row_ror:8 row_mask:0xf bank_mask:0xc")
        for r in range(0, 16, 4):
            o.append(f"v_add_f32_dpp v{SS + r}, v{SS + r}, v{SS + r} row_half_mirror row_mask:0xf bank_mask:0x5")
        for r in range(0, 16, 4):
            o.append(f"v_add_f32_dpp v{SS + r}, v{SS + r + 2}, v{SS + r + 2} row_half_mirror row_mask:0xf bank_mask:0xa")
        for h in range(2):
            o.append(f"v_permlane16_swap_b32 v{SS + 8 * h}, v{SS + 8 * h + 4}")
        for h in range(2):
            o.append(f"v_add_f32 v{RED + 2 * mt + h}, v{SS + 8 * h}, v{SS + 8 * h + 4}")
        for qp in ("[2,3,0,1]", "[1,0,3,2]"):
            for h in range(2):
                r = RED + 2 * mt + h
                o.append(f"v_add_f32_dpp v{r}, v{r}, v{r} quad_perm:{qp} row_mask:0xf bank_mask:0xf")
        return o

    def publish(mt):
        o = []
        for h in range(2):
            r = RED + 2 * mt + h
            o.append(f"v_add_f32 v{r}, v{r}, v{38 + 2 * mt + h}")
        for h in range(2):
            r = RED + 2 * mt + h
            o.append(f"v_and_b32 v{r}, 0x7fffffff, v{r}")
        for h in range(2):
            o.append(f"s_mov_b32 s47, {(2 * mt + h) * H1P}")
            o.append(f"buffer_store_dword v{RED + 2 * mt + h}, v{vPUB}, {WS}, s47 offen sc1")
        return o

    for bi in range(18):
        mt, t = divmod(bi, 6)
        if bi in (0, 1, 2, 4, 6, 8, 10, 11, 12, 14, 16):
            stamp("p1")
        src = ACC[bi % 2]
        prs = [(src + 2 * i, TMP + 2 * i) for i in range(8)]
        if bi == 10:
            prs += [(DL + 16 * m, TL + 2 * m) for m in range(3)]
        p2 = lambda r: v(r, 2)
        M = mm1(bi + 1) if bi < 17 else []
        m1, m2 = M[:3], M[3:]
        if bi < 9:
            m1 = m1[:1] + [left[2 * bi]] + m1[1:]
            m2 = m2[:1] + [left[2 * bi + 1]] + m2[1:]
        for s_, t_ in prs:
            P(f"v_pk_fma_f32 {p2(t_)}, {p2(s_)}, {p2(s_)}, s[60:61] neg_lo:[1,0,0] neg_hi:[1,0,0]")
        for s_, t_ in prs:
            P(f"v_pk_mul_f32 {p2(t_)}, {p2(s_)}, {p2(t_)}")

        def tphase(op, ms):
            tr = [f"{op} v{t_ + h}, v{t_ + h}" for _, t_ in prs for h in range(2)]
            for k, x in enumerate(tr):
                if k % 3 == 0 and k // 3 < len(ms):
                    P(ms[k // 3])
                P(x)

        tphase("v_exp_f32", m1)
        for s_, t_ in prs:
            P(f"v_pk_add_f32 {p2(t_)}, {p2(t_)}, 1.0 op_sel_hi:[1,0]")
        tphase("v_rcp_f32", m2)
        for s_, t_ in prs:
            P(f"v_pk_mul_f32 {p2(t_)}, {p2(s_)}, {p2(t_)}")
        for i in range(8):
            y, s_ = p2(TMP + 2 * i), p2(SS + 2 * i)
            P(f"v_pk_fma_f32 {s_}, {y}, {y}, {s_}" if t else f"v_pk_mul_f32 {s_}, {y}, {y}")
        cvt = [f"v_cvt_pk_bf16_f32 v{HR + 8 * bi + i}, v{TMP + 2 * i}, v{TMP + 2 * i + 1}" for i in range(8)]
        if bi < 17:
            P.extend(cvt)
        if bi == 10:
            for m in range(3):
                P(f"v_cvt_pk_bf16_f32 v{32 + m}, v{TL + 2 * m}, v{TL + 2 * m + 1}")
            for m in range(3):
                P(f"v_pk_mul_f32 {p2(TL + 2 * m)}, {p2(TL + 2 * m)}, {p2(TL + 2 * m)}")
            for m in range(3):
                P(f"ds_write_b16 v{vLH}, v{32 + m} offset:{256 * m}")
                P(f"ds_write_b16_d16_hi v{vLH}, v{32 + m} offset:{256 * m + 64}")
            for m in range(3):
                P(f"v_add_f32 v{TL + 2 * m}, v{TL + 2 * m}, v{TL + 2 * m + 1}")
            for m in range(3):
                P(f"v_mov_b32 v{TL + 2 * m + 1}, v{TL + 2 * m}")
            for m in range(3):
                P(f"v_permlane32_swap_b32 v{TL + 2 * m}, v{TL + 2 * m + 1}")
            for m in range(3):
                P(f"v_add_f32 v{TL + 2 * m}, v{TL + 2 * m}, v{TL + 2 * m + 1}")
            for m in range(3):
                for h in range(2):
                    P(f"ds_bpermute_b32 v{38 + 2 * m + h}, v{vBP}, v{TL + 2 * m} offset:{64 * h}")
        if t == 5:
            P.extend(reduce_ss(mt))
            if mt == 1:
                P.extend(publish(0))
            if mt >= 1:
                P.extend(publish(mt))
        if bi == 17:
            stamp()
            stamp("p1")
            P.extend(cvt)
    dump("h", [f"v{HR + i}" for i in range(144)], "v47")
    if opt.get("calib"):
        P(f"s_mov_b32 s47, {opt['calib']}")
        P("L_CALIB:")
        for _ in range(32):
            P("v_exp_f32 v47, v47")
        P("s_sub_u32 s47, s47, 1")
        P("s_cmp_lg_u32 s47, 0")
        P("s_cbranch_scc1 L_CALIB")

    vO, vSEL, vCNT = 1, 4, 10
    AH, AX, AXL, AB, AHL, AOL = 0, 144, 180, 192, 204, 216
    WP, WF, AC2, SV = 40, 112, 40, 16
    P(f"""
    v_and_b32 v11, 15, v0
    v_lshrrev_b32 v12, 4, v0
    s_mul_i32 s51, {sY0}, 224
    s_add_u32 s51, s51, {sX0}
    s_mul_i32 s51, s51, 192
    s_mov_b32 s52, 83328
    v_lshrrev_b32 v13, 1, v12
    v_and_b32 v14, 1, v12
    v_lshlrev_b32 v14, 2, v14
    v_lshl_add_u32 v13, v13, 4, v14
    v_lshrrev_b32 v14, 2, v11
    v_add_u32 v14, v14, v13
    v_mul_u32_u24 v14, 192, v14
    v_and_b32 v15, 3, v0
    v_lshl_add_u32 v14, v15, 4, v14
    v_add_u32 v14, s50, v14
    """)
    P(f"s_mul_i32 s47, {sW}, 192")
    P("v_lshl_add_u32 v16, v13, 1, s47")
    for j in range(3):
        for h in range(2):
            P(f"buffer_load_dwordx2 {a(AB + 4 * j + 2 * h, 2)}, v16, {B}, 0 offen offset:{64 * j + 16 * h}")
    P.wait_vm("w2")
    fidx = lambda p, j, e: p * 6 + j * 2 + e
    for p in range(3):
        for j in range(3):
            for e in range(2):
                for h in range(2):
                    P(f"ds_read_b64_tr_b16 {v(WP + 4 * fidx(p, j, e) + 2 * h, 2)}, v14 "
                      f"offset:{j * 6144 + h * 1536 + p * 64 + e * 8}")
    for i in range(3):
        P(f"""
        s_mul_i32 s47, {sW}, 3
        s_add_u32 s47, s47, {i}
        s_and_b32 s48, s47, 1
        s_mul_i32 s48, s48, 43008
        s_add_u32 s48, s48, s51
        s_lshr_b32 s47, s47, 1
        s_lshl_b32 s47, s47, 4
        v_add_u32 v15, s47, v11
        v_mul_u32_u24 v16, 4682, v15
        v_lshrrev_b32 v16, 16, v16
        v_mul_u32_u24 v15, 192, v15
        v_mad_u32_u24 v15, v16, s52, v15
        v_lshl_add_u32 v16, v12, 4, s48
        v_add_u32 v{vO + i}, v15, v16
        """)
        for p in range(3):
            P(f"buffer_load_dwordx4 {a(AX + (i * 3 + p) * 4, 4)}, v{vO + i}, {X}, 0 offen offset:{64 * p}")
    P(f"""
    s_add_u32 s53, s51, {(12 * 224 + 12) * 192}
    v_bfe_u32 v15, v0, 1, 1
    v_mul_u32_u24 v15, 43008, v15
    v_and_b32 v16, 1, v0
    v_mul_u32_u24 v16, 192, v16
    v_add3_u32 v15, v15, v16, s53
    v_lshl_add_u32 v15, v12, 4, v15
    v_cmp_gt_u32 vcc, 4, v11
    s_cmp_eq_u32 {sW}, 0
    s_cselect_b64 s[64:65], -1, 0
    s_and_b64 vcc, vcc, s[64:65]
    v_mov_b32 v17, 0
    v_cndmask_b32 v15, v8, v15, vcc
    """)
    for p in range(3):
        P(f"buffer_load_dwordx4 {a(AXL + 4 * p, 4)}, v15, {X}, 0 offen offset:{64 * p}")
    P(f"buffer_load_dword v{vCNT}, v17, {DBG}, 0 offen sc1")
    P(f"""
    v_bfe_u32 v15, v0, 4, 1
    v_lshrrev_b32 v16, 5, v0
    v_lshl_add_u32 v16, v16, 4, v11
    v_lshlrev_b32 v16, 4, v16
    v_lshl_add_u32 v15, v15, 10, v16
    s_mul_i32 s47, {sW}, 12288
    v_add_u32 v15, s47, v15
    v_add_u32 v16, 49152, v15
    v_add_u32 v17, 98304, v15
    s_mul_i32 s47, {sW}, 384
    s_add_u32 s47, s47, {BP}
    v_lshl_add_u32 v18, v12, 4, s47
    """)
    P.wait_lgkm()
    P("s_barrier")
    stamp()
    bias = [f"{MF16} {a(AOL + 4 * (2 * p + e), 4)}, {v(WP + 4 * fidx(p, j, e), 4)}, {a(AB + 4 * j, 4)}, "
            f"{a(AOL + 4 * (2 * p + e), 4) if j else 0}" for j in range(3) for p in range(3) for e in range(2)]
    for bi in range(18):
        mt, t = divmod(bi, 6)
        for c in range(2):
            P(f"ds_write_b128 v{15 + mt}, {v(HR + 8 * bi + 4 * c, 4)} offset:{t * 2048 + c * 512}")
        if bi >= 9:
            P.extend(bias[2 * (bi - 9): 2 * (bi - 9) + 2])
        for i in range(4):
            P(f"v_lshlrev_b32 v{WF + 8 * bi + 2 * i}, 16, v{WP + 4 * bi + i}")
            P(f"v_and_b32 v{WF + 8 * bi + 2 * i + 1}, 0xffff0000, v{WP + 4 * bi + i}")
    P("s_mov_b32 s64, 0x00010001")
    P("s_mov_b32 s65, 0x00010001")
    P("s_mov_b64 exec, s[64:65]")
    for mt in range(6):
        P(f"ds_write_b128 v18, {a(AOL + 4 * mt, 4)} offset:{64 * mt}")
    P("s_mov_b64 exec, -1")
    P(f"""
    v_and_b32 v19, 3, v0
    v_mul_u32_u24 v15, 384, v19
    v_lshl_add_u32 v15, v12, 4, v15
    v_add_u32 v15, {BP}, v15
    v_lshlrev_b32 v14, 6, v19
    v_lshl_add_u32 v14, v12, 4, v14
    s_mul_i32 s47, {sW}, 768
    s_add_u32 s47, s47, {LH}
    v_add_u32 v14, s47, v14
    v_lshrrev_b32 v9, 2, v11
    v_cmp_eq_u32 vcc, v9, v12
    v_and_b32 v9, 1, v0
    v_lshlrev_b32 v9, 4, v9
    v_mov_b32 v{vSEL}, 0x3f80
    v_lshlrev_b32 v9, v9, v{vSEL}
    v_cndmask_b32 v9, 0, v9, vcc
    v_and_b32 v19, 2, v0
    v_cmp_eq_u32 vcc, 0, v19
    v_mov_b32 v{vSEL}, 0
    v_mov_b32 v{vSEL + 1}, 0
    v_cndmask_b32 v{vSEL + 2}, 0, v9, vcc
    v_cndmask_b32 v{vSEL + 3}, v9, 0, vcc
    v_mov_b32 v8, 0
    v_mov_b32 v9, 0
    """)
    P.wait_lgkm()
    P("s_barrier")
    stamp()
    for mt in range(6):
        P(f"ds_read_b128 {v(SV + 4 * mt, 4)}, v15 offset:{64 * mt}")
    for m in range(3):
        P(f"ds_read_b128 {a(AHL + 4 * m, 4)}, v14 offset:{256 * m}")
    hread = []
    for rel in range(4):
        hread += [f"s_add_u32 s47, {sW}, {rel}", "s_and_b32 s47, s47, 3", "s_mul_i32 s47, s47, 12288",
                  f"s_mul_i32 s48, {sW}, 3072", "s_add_u32 s47, s47, s48",
                  f"v_lshl_add_u32 v14, v0, 4, s47", "v_add_u32 v15, 65536, v14"]
        for m in range(3):
            for i in range(3):
                off = m * 49152 + i * 1024
                reg, off = (14, off) if off < 65536 else (15, off - 65536)
                hread.append(f"ds_read_b128 {a(AH + ((rel * 3 + m) * 3 + i) * 4, 4)}, v{reg} offset:{off}")
    dpp = [f"v_add_f32_dpp v{SV + r}, v{SV + r}, v{SV + r} quad_perm:{qp} row_mask:0xf bank_mask:0xf"
           for qp in ("[1,0,3,2]", "[2,3,0,1]") for r in range(24)]
    acc2 = lambda p, i, e: AC2 + (p * 3 + i) * 8 + 4 * e
    init = [f"{MF16} {v(acc2(p, i, e), 4)}, {v(vSEL + 2 - 2 * e, 4)}, {a(AX + (i * 3 + p) * 4, 4)}, "
            f"{v(SV + 4 * (2 * p + e), 4)}" for p in range(3) for i in range(3) for e in range(2)]
    init += [f"{MF16} {a(AOL + 4 * (2 * p + e), 4)}, {v(vSEL + 2 - 2 * e, 4)}, {a(AXL + 4 * p, 4)}, "
             f"{a(AOL + 4 * (2 * p + e), 4)}" for p in range(3) for e in range(2)]
    P.extend(hread[:16])
    P.extend(weave(dpp + init, hread[16:], per=1))
    P.wait_lgkm()
    P("s_barrier")
    stamp()

    P(f"""
    v_mov_b32 v11, 0
    s_mov_b32 s54, 0
    v_readfirstlane_b32 s47, v{vCNT}
    s_cmp_ge_u32 s47, {NWG}
    s_cbranch_scc1 L_CLEARED
    """)
    P.region_begin()
    P("L_CLRPOLL:")
    P(f"buffer_load_dword v{vCNT}, v11, {DBG}, 0 offen sc1")
    P(f"""
    v_readfirstlane_b32 s47, v{vCNT}
    s_add_u32 s54, s54, 1
    s_cmp_ge_u32 s54, 0x200000
    s_cbranch_scc1 L_CLEARED
    s_cmp_lt_u32 s47, {NWG}
    s_cbranch_scc1 L_CLRPOLL
    """)
    P.region_end()
    P("L_CLEARED:")
    P(f"s_cmp_ge_u32 s2, {NRED}")
    P("s_cbranch_scc1 L_NORED")
    P.region_begin()
    P(f"""
    s_lshl_b32 s47, s2, 14
    s_lshl_b32 s48, {sW}, 10
    s_add_u32 s47, s47, s48
    v_lshl_add_u32 v11, v0, 4, s47
    v_and_b32 v12, 15, v0
    s_lshl_b32 s48, s2, 5
    v_lshl_add_u32 v13, v12, 1, s48
    s_movk_i32 s55, 0x1000
    s_movk_i32 s56, 0x2000
    s_movk_i32 s57, 0x3000
    """)
    P(f"buffer_load_ushort v32, v13, {G}, 0 offen")
    P("L_H1POLL:")
    for k, so in enumerate(("0", "s55", "s56", "s57")):
        P(f"buffer_load_dwordx4 {v(16 + 4 * k, 4)}, v11, {WS}, {so} offen sc1")
    P("v_or_b32 v13, v16, v17")
    for k in range(18, 32, 2):
        P(f"v_or3_b32 v13, v13, v{k}, v{k + 1}")
    P(f"""
    v_cmp_gt_i32 vcc, 0, v13
    s_add_u32 s54, s54, 1
    s_cmp_ge_u32 s54, 0x200000
    s_cbranch_scc1 L_H1DONE
    s_cbranch_vccnz L_H1POLL
    L_H1DONE:
    v_pk_add_f32 v[16:17], v[16:17], v[20:21]
    v_pk_add_f32 v[18:19], v[18:19], v[22:23]
    v_pk_add_f32 v[24:25], v[24:25], v[28:29]
    v_pk_add_f32 v[26:27], v[26:27], v[30:31]
    v_pk_add_f32 v[16:17], v[16:17], v[24:25]
    v_pk_add_f32 v[18:19], v[18:19], v[26:27]
    """)
    for ror in (4, 8):
        for r in range(16, 20):
            P(f"v_add_f32_dpp v{r}, v{r}, v{r} row_ror:{ror} row_mask:0xf bank_mask:0xf")
    P(f"""
    v_permlane16_swap_b32 v16, v17
    v_permlane16_swap_b32 v18, v19
    v_and_b32 v13, 3, v0
    v_lshrrev_b32 v14, 4, v0
    v_add_f32 v16, v16, v17
    v_add_f32 v18, v18, v19
    v_lshl_add_u32 v13, v13, 2, v14
    s_lshl_b32 s47, {sW}, 2
    s_add_u32 s47, s47, {RS}
    v_permlane32_swap_b32 v16, v18
    v_lshl_add_u32 v13, v13, 4, s47
    v_add_f32 v16, v16, v18
    ds_write_b32 v13, v16
    v_lshlrev_b32 v13, 4, v12
    v_add_u32 v13, {RS}, v13
    """)
    P.wait_lgkm()
    P("s_barrier")
    P(f"""
    ds_read_b128 v[16:19], v13
    v_lshrrev_b32 v15, 1, v14
    s_lshl_b32 s47, {sW}, 1
    v_add_u32 v15, s47, v15
    v_and_b32 v14, 1, v14
    v_cmp_eq_u32 vcc, 1, v14
    v_mul_u32_u24 v14, 1536, v14
    v_lshl_add_u32 v14, v15, 12, v14
    v_lshl_add_u32 v14, v12, 2, v14
    s_lshl_b32 s47, s2, 6
    s_add_u32 s47, s47, {H2}
    v_lshlrev_b32 v32, 16, v32
    v_mov_b32 v20, {f32(1e-6)}
    v_pk_add_f32 v[16:17], v[16:17], v[18:19]
    v_add_f32 v16, v16, v17
    v_fmac_f32 v20, {f32(KAP * KAP)}, v16
    v_sqrt_f32 v20, v20
    v_mul_f32 v21, v32, v20
    v_cndmask_b32 v20, v20, v21, vcc
    """)
    P(f"buffer_store_dword v20, v14, {WS}, s47 offen sc1")
    P.region_end()
    P("L_NORED:")
    stamp()
    P(f"""
    s_and_b32 s47, s2, {NREP - 1}
    s_lshl_b32 s47, s47, 12
    s_add_u32 s47, s47, {H2}
    v_lshl_add_u32 v10, v0, 4, s47
    v_lshl_add_u32 v11, v0, 3, s47
    v_lshrrev_b32 v12, 5, v0
    v_bfe_u32 v13, v0, 4, 1
    v_lshlrev_b32 v13, 4, v13
    v_lshl_add_u32 v12, v12, 6, v13
    s_mul_i32 s48, {sW}, 384
    s_add_u32 s47, s47, s48
    s_add_u32 s47, s47, 1536
    v_add_u32 v13, s47, v12
    s_mul_i32 s47, {sW}, 6144
    v_lshl_add_u32 v12, v0, 4, s47
    s_mov_b32 s62, {f32(KAP)}
    s_mov_b32 s63, {f32(KAP)}
    """)
    P.wait_vm_all()
    P("L_H2POLL:")
    P(f"buffer_load_dwordx4 v[4:7], v10, {WS}, 0 offen sc1")
    P(f"buffer_load_dwordx2 v[8:9], v11, {WS}, 0 offen offset:1024 sc1")
    for j in range(3):
        for h in range(2):
            P(f"buffer_load_dwordx4 {v(SV + 8 * j + 4 * h, 4)}, v13, {WS}, 0 offen offset:{128 * j + 32 * h} sc1")
    P("v_max3_u32 v14, v4, v5, v6")
    P("v_max3_u32 v15, v7, v8, v9")
    for k in range(12):
        r = 14 + k % 2
        P(f"v_max3_u32 v{r}, v{r}, v{SV + 2 * k}, v{SV + 2 * k + 1}")
    P(f"""
    v_max_u32 v14, v14, v15
    v_cmp_eq_u32 vcc, -1, v14
    s_add_u32 s54, s54, 1
    s_cmp_ge_u32 s54, 0x200000
    s_cbranch_scc1 L_H2DONE
    s_cbranch_vccz L_H2DONE
    s_sleep 1
    s_branch L_H2POLL
    L_H2DONE:
    """)
    stamp()
    stamp("p2")
    P(f"""
    v_pk_add_f32 v[4:5], v[4:5], v[6:7]
    v_pk_add_f32 v[4:5], v[4:5], v[8:9]
    v_add_f32 v4, v4, v5
    """)
    for ror in (1, 2, 4, 8):
        P(f"v_add_f32_dpp v4, v4, v4 row_ror:{ror} row_mask:0xf bank_mask:0xf")
    P(f"""
    v_mov_b32 v5, v4
    v_permlane16_swap_b32 v4, v5
    v_add_f32 v4, v4, v5
    v_mov_b32 v5, v4
    v_permlane32_swap_b32 v4, v5
    v_mov_b32 v6, {f32(1e-6)}
    v_add_f32 v4, v4, v5
    v_fmac_f32 v6, {f32(1 / 384)}, v4
    v_rcp_f32 v6, v6
    v_mul_f32 v6, {f32(KAP)}, v6
    """)
    for k in range(12):
        P(f"v_pk_fma_f32 {v(SV + 2 * k, 2)}, {v(SV + 2 * k, 2)}, v[6:7], s[62:63] op_sel_hi:[1,0,1]")
    dump("s", [f"v{SV + i}" for i in range(24)], "v7")

    RING, NRING = 144, 15

    def scale(p, packed):
        o = []
        for j in range(3):
            for e in range(2):
                b0 = WF + 8 * fidx(p, j, e)
                for i in range(4):
                    if packed:
                        o.append(f"v_pk_mul_f32 {v(b0 + 2 * i, 2)}, {v(b0 + 2 * i, 2)}, {v(SV + 8 * j + 2 * i, 2)}")
                    else:
                        for h in range(2):
                            o.append(f"v_mul_f32 v{b0 + 2 * i + h}, v{b0 + 2 * i + h}, v{SV + 8 * j + 2 * i + h}")
                for i in range(4):
                    o.append(f"v_cvt_pk_bf16_f32 v{b0 + i}, v{b0 + 2 * i}, v{b0 + 2 * i + 1}")
                o.append(f"ds_write_b128 v12, {v(b0, 4)} offset:{p * 24576 + (2 * j + e) * 1024}")
        return o

    def epilogue(p):
        o = []
        for i in range(3):
            b0 = acc2(p, i, 0)
            for k in range(4):
                o.append(f"v_cvt_pk_bf16_f32 v{b0 + k}, v{b0 + 2 * k}, v{b0 + 2 * k + 1}")
            o.append(f"buffer_store_dwordx4 {v(b0, 4)}, v{vO + i}, {OUT}, 0 offen offset:{64 * p}{opt['st']}")
        return o

    stamp("p2")
    P.extend(scale(0, True))
    stamp("p2")
    ring = 0
    for p in range(3):
        mm, reads = [], []
        for j in range(3):
            for e in range(2):
                A = v(WF + 8 * fidx(p, j, e), 4)
                for i in range(3):
                    d = v(acc2(p, i, e), 4)
                    mm.append(f"{MF16} {d}, {A}, {a(AH + (j * 3 + i) * 4, 4)}, {d}")
                d = a(AOL + 4 * (2 * p + e), 4)
                mm.append(f"{MF16} {d}, {A}, {a(AHL + 4 * j, 4)}, {d}")
        for rel in range(1, 4):
            for j in range(3):
                for e in range(2):
                    slot = RING + 4 * (ring % NRING)
                    k = len(reads)
                    reads.append(f"ds_read_b128 {a(slot, 4)}, v{12 + rel} offset:{p * 24576 + (2 * j + e) * 1024}")
                    ring += 1
                    for i in range(3):
                        d = v(acc2(p, i, e), 4)
                        mm.append(f"{MF16} {d}, {a(slot, 4)}, {a(AH + ((rel * 3 + j) * 3 + i) * 4, 4)}, {d}")
        fill = []
        if p == 0:
            for rel in range(1, 4):
                fill += [f"s_add_u32 s47, {sW}, {rel}", "s_and_b32 s47, s47, 3", "s_mul_i32 s47, s47, 6144",
                         f"v_lshl_add_u32 v{12 + rel}, v0, 4, s47"]
        fill += [("wait_lgkm", None), "s_barrier"] + reads[:12]
        if p > 0:
            fill += epilogue(p - 1)
        rest = scale(p + 1, False) if p < 2 else []
        if p == 2:
            rest = [f"v_and_b32 v4, 15, v0", "v_lshrrev_b32 v5, 4, v0", "v_mul_u32_u24 v4, 384, v4",
                    "v_lshl_add_u32 v4, v5, 5, v4", f"s_mul_i32 s47, {sW}, 1536", f"s_add_u32 s47, s47, {LO}",
                    "v_add_u32 v4, s47, v4", "s_mov_b32 s64, 0x000f000f", "s_mov_b32 s65, 0x000f000f",
                    ("at", 27)]
            rest.append("\n".join(["s_mov_b64 exec, s[64:65]"] + [
                f"ds_write_b128 v4, {a(AOL + 4 * mt, 4)} offset:{(mt // 2) * 128 + (mt % 2) * 16}"
                for mt in range(6)] + ["s_mov_b64 exec, -1"]))
            rest += ["v_mul_u32_u24 v5, 5462, v0", "v_lshrrev_b32 v5, 16, v5",
                     "v_mad_i32_i24 v6, v5, -12, v0", "v_lshrrev_b32 v7, 1, v5", "v_mul_u32_u24 v7, 43008, v7",
                     "v_and_b32 v5, 1, v5", "v_mul_u32_u24 v5, 192, v5", "v_add3_u32 v5, v5, v7, s53",
                     "v_lshl_add_u32 v5, v6, 4, v5", "v_cmp_gt_u32 vcc, 48, v0", f"s_cmp_eq_u32 {sW}, 0",
                     "s_cselect_b64 s[64:65], -1, 0", "s_and_b64 vcc, vcc, s[64:65]", f"v_mov_b32 v6, {OOB}",
                     "v_min_u32 v7, 47, v0", "v_cndmask_b32 v5, v6, v5, vcc", "v_lshlrev_b32 v7, 5, v7",
                     f"v_add_u32 v7, {LO}, v7"]
        for k in range(12, 18):
            fill += rest[: len(rest) // (19 - k)]
            rest = rest[len(rest) // (19 - k):]
            fill += [("at", 24 + 3 * max(0, k - NRING + 1) if k >= NRING else 0), reads[k]]
        fill += rest
        if p == 2:
            fill += [("wait_lgkm", None), "s_barrier"]
            for w_ in range(4):
                for e in range(2):
                    fill.append(f"ds_read_b128 {v(40 + 8 * w_ + 4 * e if w_ < 3 else 16 + 4 * e, 4)}, v7 "
                                f"offset:{w_ * 1536 + 16 * e}")
            for k in range(8):
                fill.append(f"v_add_f32 v{40 + k}, v{40 + k}, v{48 + k}")
                fill.append(f"v_add_f32 v{16 + k}, v{16 + k}, v{56 + k}")
            for k in range(8):
                fill.append(f"v_add_f32 v{40 + k}, v{40 + k}, v{16 + k}")
            for k in range(4):
                fill.append(f"v_cvt_pk_bf16_f32 v{40 + k}, v{40 + 2 * k}, v{41 + 2 * k}")
            fill.append(f"buffer_store_dwordx4 v[40:43], v5, {OUT}, 0 offen{opt['st']}")
        seq = weave(mm, fill, per=2)
        for k, rd_ in enumerate(reads):
            assert seq.index(rd_) < seq.index(mm[24 + 3 * k]), (p, k)
            if k >= NRING:
                assert seq.index(rd_) > seq.index(mm[24 + 3 * (k - NRING) + 2]), (p, k)
        for part in (seq[:seq.index(mm[24])], seq[seq.index(mm[24]):seq.index(mm[51])], seq[seq.index(mm[51]):]):
            P.extend(part)
            stamp("p2")
    P.extend(epilogue(2))
    stamp()
    stamp("p2")
    if opt.get("dbgtime"):
        P.wait_vm_all()
        P("""
        s_memrealtime s[92:93]
        s_memtime s[94:95]
        s_waitcnt lgkmcnt(0)
        s_sub_u32 s94, s94, s98
        s_sub_u32 s95, s92, s96
        s_not_b32 s96, s96
        v_mov_b32 v4, s92
        v_mov_b32 v5, s96
        v_mov_b32 v6, s94
        v_mov_b32 v7, s95
        v_mov_b32 v8, 0
        s_mov_b64 exec, 1
        """)
        for k in range(4):
            P(f"buffer_atomic_umax v{4 + k}, v8, {DBG}, 0 offen offset:{4 + 4 * k}")
        P("s_mov_b64 exec, -1")
    if opt["stamps"]:
        P.wait_vm_all()
        stamp()
        P.wait_lgkm()
        P(f"s_lshl_b32 s47, s2, 2")
        P(f"s_add_u32 s47, s47, {sW}")
        P(f"s_lshl_b32 s47, s47, 6")
        P(f"s_add_u32 s47, s47, {DIAG}")
        P("v_mov_b32 v4, 0")
        for k in range(nstamp[0]):
            P(f"v_mov_b32 v5, s{72 + 2 * k}")
            P(f"buffer_store_dword v5, v4, {WS}, s47 offen offset:{4 * k}")
    P("L_END:")
    P("s_endpgm")
    P("L_CODE_END:")
    body = P.render()
    head = open(f"cdna_kernels/{NAME}.s.ref").read().split("\n")
    head = [x for x in head[: next(i for i, y in enumerate(head) if "@launch" in y)]]
    text = "\n".join(head) + f"""
; @launch grid=({NWG},1,1) block=(256,1,1) lds={LDS_BYTES}
.amdgcn_target "amdgcn-amd-amdhsa--gfx950"
.text
.globl {NAME}_kernel
.p2align 8
.type {NAME}_kernel,@function
{NAME}_kernel:
{body}.section .rodata,"a"
.p2align 6
.amdhsa_kernel {NAME}_kernel
  .amdhsa_next_free_vgpr 512
  .amdhsa_next_free_sgpr 102
  .amdhsa_accum_offset 256
  .amdhsa_group_segment_fixed_size 0
  .amdhsa_kernarg_size 72
  .amdhsa_user_sgpr_count 2
  .amdhsa_user_sgpr_kernarg_segment_ptr 1
  .amdhsa_system_sgpr_workgroup_id_x 1
  .amdhsa_float_denorm_mode_32 3
.end_amdhsa_kernel
"""
    return text, P


if __name__ == "__main__":
    out = sys.argv[1] if len(sys.argv) > 1 else f"cdna_kernels/{NAME}.s"
    opt = eval(sys.argv[2]) if len(sys.argv) > 2 else {}
    text, P = generate(opt)
    open(out, "w").write(text)
    n = sum(1 for x in P.final if x.kind != "meta")
    print(f"{out}: {n} instructions, {P.pads} padded wait states")
```
